```python
import torch

def _softmax(x, axis=-1):
    return torch.softmax(x, dim=axis)
def _gelu(x):
    return torch.nn.functional.gelu(x, approximate="tanh")
def _silu(x):
    return torch.nn.functional.silu(x)
def _sigmoid(x):
    return torch.sigmoid(x)
def _layernorm(x, axis=-1, eps=1e-5):
    m = x.mean(dim=axis, keepdim=True)
    v = x.var(dim=axis, keepdim=True, unbiased=False)
    return (x - m) / torch.sqrt(v + eps)
def _scatter_add(tgt, idx, src, axis=0):
    return tgt.clone().index_add_(axis, idx, src)
def _segment_sum(src, seg, n):
    out = torch.zeros((n,) + src.shape[1:], dtype=src.dtype)
    return out.index_add_(0, seg, src)
def _pad(x, pw):
    flat = tuple(v for pair in reversed(pw) for v in pair)
    return torch.nn.functional.pad(x, flat)

kernel_name = 'gated_mix__grouped_kv_mqa__mixer_s_mlp__prompt'

def setup_inputs():

    _w = (lambda a: (lambda t: t.to(torch.bfloat16) if t.is_floating_point() else t)(torch.as_tensor(a)))
    def _A_setup():
        B, S, D, H = 1, 2048, 640, 32
        Dh = D // H
        return {
            "x": _w((lambda *s: torch.randn(*s, dtype=torch.bfloat16) * 0.05)(B, S, D)),
            "wq": _w((lambda *s: torch.randn(*s, dtype=torch.bfloat16) * 0.8)(D, H * Dh)),
            "wk": _w((lambda *s: torch.randn(*s, dtype=torch.bfloat16) * 0.8)(D, Dh)),
            "wv": _w((lambda *s: torch.randn(*s, dtype=torch.bfloat16) * 1.6)(D, Dh)),
            "wo": _w((lambda *s: torch.randn(*s, dtype=torch.bfloat16) * 1.6)(H * Dh, D)),
        }
    _A_in = _A_setup()

    def _B_setup():
        B, S, D, F = 1, 2048, 640, 1728
        return {
            "x":  _w((lambda *s: torch.randn(*s, dtype=torch.bfloat16) * 0.05)(B, S, D)),
            "w1": _w((lambda *s: torch.randn(*s, dtype=torch.bfloat16) * 3.2)(D, D) * (D ** -0.5)),
            "w2": _w((lambda *s: torch.randn(*s, dtype=torch.bfloat16) * 3.2)(D, D) * (D ** -0.5)),
            "w3": _w((lambda *s: torch.randn(*s, dtype=torch.bfloat16) * 3.2)(D, F) * (D ** -0.5)),
            "w4": _w((lambda *s: torch.randn(*s, dtype=torch.bfloat16) * 1.6)(F, D) * (F ** -0.5)),
        }
    _B_in = _B_setup()

    return {
        "A_x": _A_in["x"],
        "A_wq": _A_in["wq"],
        "A_wk": _A_in["wk"],
        "A_wv": _A_in["wv"],
        "A_wo": _A_in["wo"],
        "B_x": _B_in["x"],
        "B_w1": _B_in["w1"],
        "B_w2": _B_in["w2"],
        "B_w3": _B_in["w3"],
        "B_w4": _B_in["w4"],
        "gate_w": _w((lambda *s: torch.randn(*s, dtype=torch.bfloat16) * 0.1)(640) * 16.0),
    }

def reference(A_x, A_wq, A_wk, A_wv, A_wo, B_x, B_w1, B_w2, B_w3, B_w4, gate_w):
    def _A_ref(x, wq, wk, wv, wo):
        B, S, D = x.shape
        H = 32
        Dh = D // H
        q = (lambda x, *d: x.permute(*d))((x @ wq).reshape(B, S, H, Dh), 0, 2, 1, 3)
        k = x @ wk
        v = x @ wv
        scores = torch.einsum("bhqd,bkd->bhqk", q, k) * (Dh ** -0.5)
        p = _softmax(scores, axis=-1)
        o = torch.einsum("bhqk,bkd->bhqd", p, v)
        return (lambda x, *d: x.permute(*d))(o, 0, 2, 1, 3).reshape(B, S, H * Dh) @ wo

    def _B_ref(x, w1, w2, w3, w4):
        B, S, D = x.shape
        h = _gelu(_layernorm(x, axis=-1) @ w1)
        c = D // 4
        g0 = _pad(h[:, :, 0*c:1*c], ((0, 0), (1, 0), (0, 0)))[:, :S, :]
        g1 = _pad(h[:, :, 1*c:2*c], ((0, 0), (0, 1), (0, 0)))[:, 1:, :]
        g2 = _pad(h[:, :, 2*c:3*c], ((0, 0), (2, 0), (0, 0)))[:, :S, :]
        g3 = _pad(h[:, :, 3*c:   ], ((0, 0), (0, 2), (0, 0)))[:, 2:, :]
        hs = torch.concatenate([g0, g1, g2, g3], axis=-1) @ w2
        x1 = x + hs
        h2 = _gelu(_layernorm(x1, axis=-1) @ w3) @ w4
        return x1 + h2

    x = A_x
    g = _sigmoid((x * gate_w).sum(-1, keepdims=True))
    a = _A_ref(x, A_wq, A_wk, A_wv, A_wo)
    b = _B_ref(x, B_w1, B_w2, B_w3, B_w4)
    return g * a + (1 - g) * b
```

```python
import struct
def f2u(x):
    return struct.unpack("<I", struct.pack("<f", x))[0]
def hexf(x):
    return "0x%08x" % f2u(x)
def vr(b, n=1):
    return f"v{b}" if n == 1 else f"v[{b}:{b+n-1}]"
def sr(b, n=1):
    return f"s{b}" if n == 1 else f"s[{b}:{b+n-1}]"
PROFILE = False
PROF_OFF = 64 << 20
class Kern:
    def stamp_init(self, slot):
        self.prof = PROFILE
        if not self.prof: return
        self.pslot = slot
        self.pst = [self.s(2) for _ in range(7)]
        self.prt = self.s(2)
        self.pn = 0
        self.e(f"s_memrealtime s[{self.prt}:{self.prt+1}]")
        self.stamp()
    def stamp(self):
        if not self.prof: return
        if self.pn >= 7: return
        r = self.pst[self.pn]; self.pn += 1
        self.e(f"s_memtime s[{r}:{r+1}]")
    def stamp_at(self, i):
        if not self.prof: return
        r = self.pst[i]
        self.e(f"s_memtime s[{r}:{r+1}]")
    def stamp_flush(self, pWS, vtmp, stmp, wave_sreg=None, nwaves=1):
        if not self.prof: return
        e = self.e
        rte = self.s(2)
        e(f"s_memrealtime s[{rte}:{rte+1}]")
        e("s_waitcnt lgkmcnt(0)")
        q = self.s(4)
        self.srd(q, pWS, 1 << 22, add=PROF_OFF + self.pslot * (1 << 22))
        e(f"s_mul_i32 s{stmp}, s2, {nwaves*64}")
        if wave_sreg is not None:
            t2 = self.s()
            e(f"s_lshl_b32 s{t2}, s{wave_sreg}, 6")
            e(f"s_add_u32 s{stmp}, s{stmp}, s{t2}")
        vals = [self.prt] + self.pst + [rte]
        e(f"v_mov_b32 v{vtmp}, 0")
        e(f"s_mov_b64 exec, 1")
        for i, r in enumerate(vals):
            e(f"v_mov_b32 v{vtmp+1}, s{r}")
            e(f"buffer_store_dword v{vtmp+1}, v{vtmp}, s[{q}:{q+3}], s{stmp} offen offset:{i*4}")
            e("s_nop 1")
    def __init__(self, name):
        self.name = name
        self.lines = []
        self.nv = 1
        self.ns = 3
        self.maxv = 1
        self.maxs = 3
        self.nlab = 0
    def e(self, s):
        self.lines.append("    " + s)
    def c(self, s):
        self.lines.append("    ; " + s)
    def lab(self, l):
        self.lines.append(f"{l}:")
    def newlab(self, p="L"):
        self.nlab += 1
        return f"{self.name}_{p}{self.nlab}"
    def v(self, n=1, align=None):
        if align is None:
            align = 1 if n == 1 else (2 if n == 2 else 4)
        b = (self.nv + align - 1) // align * align
        self.nv = b + n
        self.maxv = max(self.maxv, self.nv)
        return b
    def s(self, n=1, align=None):
        if align is None:
            align = 1 if n == 1 else (2 if n == 2 else 4)
        b = (self.ns + align - 1) // align * align
        self.ns = b + n
        assert self.ns <= 100, "out of sgprs"
        self.maxs = max(self.maxs, self.ns)
        return b
    def vmark(self): return self.nv
    def vreset(self, m): self.nv = m
    def smark(self): return self.ns
    def sreset(self, m): self.ns = m
    def srd(self, q, ptr, nbytes, add=0):
        if add:
            self.e(f"s_add_u32 s{q}, s{ptr}, {add}")
            self.e(f"s_addc_u32 s{q+1}, s{ptr+1}, 0")
        else:
            self.e(f"s_mov_b32 s{q}, s{ptr}")
            self.e(f"s_mov_b32 s{q+1}, s{ptr+1}")
        self.e(f"s_mov_b32 s{q+2}, {nbytes}")
        self.e(f"s_mov_b32 s{q+3}, 0x20000")
    def text(self, vgprs=None, sgprs=None):
        nv = vgprs or self.maxv
        ns = sgprs or max(self.maxs, 16)
        nv8 = (nv + 7) // 8 * 8
        acc = (nv + 3) // 4 * 4
        hdr = f".globl {self.name}\n.p2align 8\n.type {self.name},@function\n{self.name}:\n"
        body = "\n".join(self.lines)
        kd = f"""
.section .rodata,"a"
.p2align 6
.amdhsa_kernel {self.name}
  .amdhsa_next_free_vgpr {nv}
  .amdhsa_next_free_sgpr {ns}
  .amdhsa_accum_offset {acc}
  .amdhsa_group_segment_fixed_size 0
  .amdhsa_kernarg_size 112
  .amdhsa_user_sgpr_count 2
  .amdhsa_user_sgpr_kernarg_segment_ptr 1
  .amdhsa_system_sgpr_workgroup_id_x 1
  .amdhsa_float_denorm_mode_32 3
  .amdhsa_float_denorm_mode_16_64 3
.end_amdhsa_kernel
.text
"""
        return hdr + body + "\n" + kd
KA = dict(x=0, wq=8, wk=16, wv=24, wo=32, bx=40, w1=48, w2=56, w3=64, w4=72, gate=80, out=88, dbg=96, ws=104)
```

```python
from asmlib import *
from layout import *
import math, os
EXP = os.environ.get('EXP', '')

def wg_map(k, sRB, sC, tmp):
    e = k.e
    e(f"s_and_b32 s{tmp}, s2, 6")
    e(f"s_lshl_b32 s{sRB}, s{tmp}, 2")
    e(f"s_lshr_b32 s{sC}, s2, 5")
    e(f"s_and_b32 s{sC}, s{sC}, 7")
    e(f"s_add_u32 s{sRB}, s{sRB}, s{sC}")
    e(f"s_and_b32 s{sC}, s2, 1")
    e(f"s_lshl_b32 s{sC}, s{sC}, 2")
    e(f"s_bfe_u32 s{tmp}, s2, 0x20003")
    e(f"s_add_u32 s{sC}, s{sC}, s{tmp}")

def gelu_vals(k, vals, t1, cA, cB):
    e = k.e
    n = len(vals)
    for i in range(n): e(f"v_mul_f32 v{t1[i]}, v{vals[i]}, v{vals[i]}")
    for i in range(n): e(f"v_fma_f32 v{t1[i]}, v{t1[i]}, v{cB}, v{cA}")
    for i in range(n): e(f"v_mul_f32 v{t1[i]}, v{t1[i]}, v{vals[i]}")
    for i in range(n): e(f"v_exp_f32 v{t1[i]}, v{t1[i]}")
    for i in range(n): e(f"v_add_f32 v{t1[i]}, 1.0, v{t1[i]}")
    for i in range(n): e(f"v_rcp_f32 v{t1[i]}, v{t1[i]}")
    for i in range(n): e(f"v_mul_f32 v{vals[i]}, v{vals[i]}, v{t1[i]}")

GELU_A = -2.0*math.sqrt(2.0/math.pi)*math.log2(math.e)
GELU_B = GELU_A*0.044715

def reduce_g(k, val, t1, t2, op="v_add_f32"):
    e = k.e
    e(f"v_mov_b32 v{t1}, v{val}")
    e(f"v_mov_b32 v{t2}, v{val}")
    e("s_nop 1")
    e(f"v_permlane32_swap_b32 v{t1}, v{t2}")
    e("s_nop 1")
    e(f"{op} v{val}, v{t1}, v{t2}")
    e(f"v_mov_b32 v{t1}, v{val}")
    e(f"v_mov_b32 v{t2}, v{val}")
    e("s_nop 1")
    e(f"v_permlane16_swap_b32 v{t1}, v{t2}")
    e("s_nop 1")
    e(f"{op} v{val}, v{t1}, v{t2}")

K1_STAGE = 28672
K1_KVW = 4*K1_STAGE
K1_CS = K1_KVW + 20480
K1_LDS = K1_CS + 512
K1_THREADS = 768

def interleave(prim, sec, lead=0):
    out = list(sec[:lead]); sec = list(sec[lead:])
    n = len(prim); m = len(sec); j = 0
    for i, p in enumerate(prim):
        out.append(p)
        tgt = (i + 1) * m // n
        while j < tgt:
            out.append(sec[j]); j += 1
    out += sec[j:]
    return out

def gen_k1():
    k = Kern("k1_kernel")
    e = k.e
    sW = k.s(); sRB = k.s(); sC = k.s(); sT = k.s(); sT2 = k.s(); sT3 = k.s()
    pX = k.s(2); pWQ = k.s(2); pWK = k.s(2); pWV = k.s(2); pW1 = k.s(2); pG = k.s(2); pWS = k.s(2)
    srdA = k.s(4); srdB = k.s(4); srdWS = k.s(4); srdT = k.s(4)
    sSt = k.s(); sIssue = k.s(); sSlot = k.s(); sRole = k.s(); sR = k.s()
    sOffA = k.s(); sOffB = k.s()
    sEx = k.s(2)
    END = k.name + "_end"
    e(f"s_cmp_ge_u32 s2, 256")
    e(f"s_cbranch_scc1 {END}2")
    k.stamp_init(0)
    e(f"s_load_dwordx2 s[{pX}:{pX+1}], s[0:1], {KA['x']}")
    e(f"s_load_dwordx2 s[{pWQ}:{pWQ+1}], s[0:1], {KA['wq']}")
    e(f"s_load_dwordx2 s[{pW1}:{pW1+1}], s[0:1], {KA['w1']}")
    e(f"s_load_dwordx2 s[{pWK}:{pWK+1}], s[0:1], {KA['wk']}")
    e(f"s_load_dwordx2 s[{pWV}:{pWV+1}], s[0:1], {KA['wv']}")
    e(f"s_load_dwordx2 s[{pG}:{pG+1}], s[0:1], {KA['gate']}")
    e(f"s_load_dwordx2 s[{pWS}:{pWS+1}], s[0:1], {KA['ws']}")
    vLane = k.v(); vM = k.v(); vG = k.v()
    vt = [k.v() for _ in range(8)]
    e(f"v_lshrrev_b32 v{vt[0]}, 6, v0")
    e(f"v_and_b32 v{vLane}, 63, v0")
    e(f"v_readfirstlane_b32 s{sW}, v{vt[0]}")
    wg_map(k, sRB, sC, sT)
    LCOMP = k.newlab("comp")
    e(f"s_cmp_lt_u32 s{sW}, 8")
    e(f"s_cbranch_scc1 {LCOMP}")
    mark = k.vmark()
    vXE = k.v(); vXO = k.v(); vWl = [k.v() for _ in range(4)]
    e(f"v_lshrrev_b32 v{vt[0]}, 3, v{vLane}")
    e(f"v_and_b32 v{vt[1]}, 7, v{vLane}")
    e(f"v_lshrrev_b32 v{vt[2]}, 4, v{vLane}")
    e(f"v_xor_b32 v{vt[1]}, v{vt[1]}, v{vt[2]}")
    e(f"v_mul_u32_u24 v{vt[0]}, 1280, v{vt[0]}")
    e(f"v_lshl_add_u32 v{vXE}, v{vt[1]}, 4, v{vt[0]}")
    e(f"v_xor_b32 v{vXO}, 64, v{vXE}")
    e(f"v_mul_u32_u24 v{vt[0]}, 6554, v{vLane}")
    e(f"v_lshrrev_b32 v{vt[0]}, 16, v{vt[0]}")
    e(f"v_mul_u32_u24 v{vt[1]}, 10, v{vt[0]}")
    e(f"v_sub_u32 v{vt[1]}, v{vLane}, v{vt[1]}")
    e(f"v_mul_u32_u24 v{vt[0]}, 1280, v{vt[0]}")
    e(f"v_lshl_add_u32 v{vt[0]}, v{vt[1]}, 4, v{vt[0]}")
    e(f"s_mul_i32 s{sT2}, s{sC}, 160")
    e(f"v_add_u32 v{vWl[0]}, s{sT2}, v{vt[0]}")
    for u in range(1, 4):
        e(f"v_add_u32 v{vWl[u]}, {u*(7680-960)}, v{vWl[0]}")
    M60 = k.s(2); M40 = k.s(2)
    e(f"s_mov_b32 s{M60}, -1"); e(f"s_mov_b32 s{M60+1}, 0x0fffffff")
    e(f"s_mov_b32 s{M40}, -1"); e(f"s_mov_b32 s{M40+1}, 0xff")
    e(f"s_mul_i32 s{sOffA}, s{sRB}, {64*1280}")
    e(f"s_mov_b32 s{sOffB}, 0")
    e("s_waitcnt lgkmcnt(0)")
    k.srd(srdA, pX, S*D*2)
    k.srd(srdB, pWQ, D*D*2)
    k.srd(srdT, pW1, D*D*2)
    def w_group(srd, i0, n, ldsbase, slot):
        i = i0
        while i < i0 + n:
            cnt = min(4, i0 + n - i)
            e(f"s_add_u32 m0, s{slot}, {ldsbase + i*960}")
            e(f"s_add_u32 s{sT}, s{sOffB}, {i*7680}")
            for u in range(cnt):
                if i + u == 10: e(f"s_mov_b64 exec, s[{M40}:{M40+1}]")
                e(f"buffer_load_dwordx4 v{vWl[u]}, s[{srd}:{srd+3}], s{sT} offen offset:{u*960} lds")
            i += cnt
    NLD = 4
    plan = [[("x", 0, 8)], [("q", 0, 8)], [("q", 8, 3), ("h", 0, 4)], [("h", 4, 7)]]
    cnt = [sum(x[2] for x in p) for p in plan]
    def issue(which, slot):
        for (kind, i0, n) in plan[which]:
            if kind == "x":
                for j in range(i0, i0 + n):
                    if j % 4 == 0:
                        e(f"s_add_u32 m0, s{slot}, {j*1024}")
                    e(f"s_add_u32 s{sT}, s{sOffA}, {j*10240 - (j%4)*1024}")
                    e(f"buffer_load_dwordx4 v{vXE if j % 2 == 0 else vXO}, s[{srdA}:{srdA+3}], s{sT} offen offset:{(j%4)*1024} lds")
                e(f"s_add_u32 s{sOffA}, s{sOffA}, 128")
            else:
                e(f"s_mov_b64 exec, s[{M60}:{M60+1}]")
                w_group(srdB if kind == "q" else srdT, i0, n, 8192 + (0 if kind == "q" else 10240), slot)
        e(f"s_mov_b64 exec, -1")
        e(f"s_add_u32 s{sOffB}, s{sOffB}, {64*1280}")
    vCW = k.v(); cwf = [[k.v(4), k.v(4)], [k.v(4), k.v(4)]]
    cacc = [k.v(4), k.v(4)]
    vOn = k.v(4)
    for i in range(4): e(f"v_mov_b32 v{vOn+i}, 0x3f803f80")
    for a_ in cacc:
        for i in range(4): e(f"v_mov_b32 v{a_+i}, 0")
    e(f"v_lshrrev_b32 v{vt[0]}, 2, v{vLane}")
    e(f"v_and_b32 v{vt[1]}, 3, v{vLane}")
    e(f"v_lshlrev_b32 v{vt[1]}, 3, v{vt[1]}")
    e(f"v_mul_u32_u24 v{vt[2]}, 160, v{vt[0]}")
    e(f"s_sub_u32 s{sT}, s{sW}, 8")
    e(f"s_lshl_b32 s{sT}, s{sT}, 5")
    e(f"s_add_u32 s{sT}, s{sT}, {8192 + 10240}")
    e(f"v_add3_u32 v{vCW}, v{vt[2]}, v{vt[1]}, s{sT}")
    vCWc = k.v()
    def colsum(which, slot):
        e(f"v_add_u32 v{vCWc}, s{slot}, v{vCW}")
        nf = 2 if which == 0 else 1
        for j in range(nf):
            for s_ in range(2):
                off = s_*5120 + j*128
                e(f"ds_read_b64_tr_b16 v[{cwf[j][s_]}:{cwf[j][s_]+1}], v{vCWc} offset:{off}")
                e(f"ds_read_b64_tr_b16 v[{cwf[j][s_]+2}:{cwf[j][s_]+3}], v{vCWc} offset:{off + 2560}")
        e("s_waitcnt lgkmcnt(0)")
        for j in range(nf):
            for s_ in range(2):
                e(f"v_mfma_f32_16x16x32_bf16 v[{cacc[j]}:{cacc[j]+3}], v[{cwf[j][s_]}:{cwf[j][s_]+3}], v[{vOn}:{vOn+3}], v[{cacc[j]}:{cacc[j]+3}]")
    labs = [k.newlab("ld") for _ in range(NLD)]
    for which in range(1, NLD):
        e(f"s_cmp_eq_u32 s{sW}, {8+which}")
        e(f"s_cbranch_scc1 {labs[which]}")
    sRd = k.s()
    def nextslot(r):
        e(f"s_add_u32 s{r}, s{r}, {K1_STAGE}")
        e(f"s_cmp_eq_u32 s{r}, {4*K1_STAGE}")
        e(f"s_cselect_b32 s{r}, 0, s{r}")
    for which in range(NLD):
        k.lab(labs[which])
        n1 = cnt[which]
        for st in range(2):
            e(f"s_mov_b32 s{sSlot}, {st*K1_STAGE}")
            issue(which, sSlot)
            if st == 0: k.stamp_at(3)
        e(f"s_waitcnt vmcnt({n1})")
        e("s_barrier")
        k.stamp_at(1)
        for st in range(2, 4):
            e(f"s_mov_b32 s{sSlot}, {st*K1_STAGE}")
            issue(which, sSlot)
        k.stamp_at(4)
        e(f"s_mov_b32 s{sRd}, 0")
        colsum(which, sRd)
        e(f"s_mov_b32 s{sSt}, 1")
        e(f"s_mov_b32 s{sSlot}, 0")
        e(f"s_mov_b32 s{sRd}, {K1_STAGE}")
        LOOP = k.newlab("lloop")
        k.lab(LOOP)
        e(f"s_waitcnt vmcnt({2*n1})")
        e("s_barrier")
        if 'nodma' not in EXP: issue(which, sSlot)
        colsum(which, sRd)
        nextslot(sSlot); nextslot(sRd)
        e(f"s_add_u32 s{sSt}, s{sSt}, 1")
        e(f"s_cmp_lt_u32 s{sSt}, 7")
        e(f"s_cbranch_scc1 {LOOP}")
        for (j, allowed) in ((7, 2*n1), (8, n1), (9, 0)):
            e(f"s_waitcnt vmcnt({allowed})")
            e("s_barrier")
            colsum(which, sRd)
            if j < 9: nextslot(sRd)
        k.stamp_at(2)
        e("s_nop 7")
        e(f"v_lshlrev_b32 v{vt[0]}, 4, v{vLane}")
        e(f"v_lshrrev_b32 v{vt[0]}, 4, v{vt[0]}")
        e(f"v_lshrrev_b32 v{vt[0]}, 4, v{vt[0]}")
        e(f"v_lshlrev_b32 v{vt[0]}, 4, v{vt[0]}")
        e(f"s_sub_u32 s{sT}, s{sW}, 8")
        e(f"s_lshl_b32 s{sT}, s{sT}, 6")
        e(f"s_add_u32 s{sT}, s{sT}, {K1_CS}")
        e(f"v_add_u32 v{vt[0]}, s{sT}, v{vt[0]}")
        e(f"s_mov_b32 s{sEx}, 0x00010001")
        e(f"s_mov_b32 s{sEx+1}, 0x00010001")
        e(f"s_mov_b64 exec, s[{sEx}:{sEx+1}]")
        e(f"ds_write_b128 v{vt[0]}, v[{cacc[0]}:{cacc[0]+3}]")
        if which == 0:
            e(f"ds_write_b128 v{vt[0]}, v[{cacc[1]}:{cacc[1]+3}] offset:256")
        e(f"s_mov_b64 exec, -1")
        e("s_waitcnt lgkmcnt(0)")
        e("s_barrier")
        e(f"s_branch {END}")
    k.vreset(mark)
    k.lab(LCOMP)
    xf = [[k.v(4), k.v(4)] for _ in range(2)]
    wf = [[[k.v(4) for _ in range(5)] for _ in range(2)] for _ in range(2)]
    csa = [k.v(4) for _ in range(5)]
    kvf = [[csa[0], csa[1]], [csa[2], csa[3]]]
    vKV = wf[0][0][0]; vKV2 = vKV + 8
    vP2 = vKV + 16; vKa = vKV + 17; vKa2 = vKV + 18
    LNOKV = k.newlab("nokv")
    e(f"s_cmp_ge_u32 s{sC}, 4")
    e(f"s_cbranch_scc1 {LNOKV}")
    e(f"v_add_u32 v{vP2}, 512, v0")
    for i in range(8):
        e(f"v_mov_b32 v{vKV+i}, 0")
        e(f"v_mov_b32 v{vKV2+i}, 0")
    e(f"v_mul_u32_u24 v{vKa}, 40, v0")
    e(f"v_mul_u32_u24 v{vKa2}, 40, v{vP2}")
    e("s_waitcnt lgkmcnt(0)")
    e(f"s_cmp_lt_u32 s{sC}, 2")
    e(f"s_cselect_b32 s{srdT}, s{pWK}, s{pWV}")
    e(f"s_cselect_b32 s{srdT+1}, s{pWK+1}, s{pWV+1}")
    e(f"s_mov_b32 s{srdT+2}, {D*DH*2}")
    e(f"s_mov_b32 s{srdT+3}, 0x20000")
    LODD = k.newlab("kvodd"); LKVD = k.newlab("kvdone")
    e(f"s_and_b32 s{sT}, s{sC}, 1")
    e(f"s_cmp_eq_u32 s{sT}, 1")
    e(f"s_cbranch_scc1 {LODD}")
    e(f"buffer_load_dwordx4 v[{vKV}:{vKV+3}], v{vKa}, s[{srdT}:{srdT+3}], 0 offen")
    e(f"buffer_load_dwordx4 v[{vKV+4}:{vKV+7}], v{vKa}, s[{srdT}:{srdT+3}], 0 offen offset:16")
    e(f"buffer_load_dwordx4 v[{vKV2}:{vKV2+3}], v{vKa2}, s[{srdT}:{srdT+3}], 0 offen")
    e(f"buffer_load_dwordx4 v[{vKV2+4}:{vKV2+7}], v{vKa2}, s[{srdT}:{srdT+3}], 0 offen offset:16")
    e(f"s_branch {LKVD}")
    k.lab(LODD)
    e(f"buffer_load_dwordx2 v[{vKV}:{vKV+1}], v{vKa}, s[{srdT}:{srdT+3}], 0 offen offset:32")
    e(f"buffer_load_dwordx2 v[{vKV2}:{vKV2+1}], v{vKa2}, s[{srdT}:{srdT+3}], 0 offen offset:32")
    e(f"s_cmp_lg_u32 s{sC}, 1")
    e(f"s_cbranch_scc1 {LKVD}")
    k.srd(srdT, pG, D*2)
    e(f"v_lshlrev_b32 v{vKa}, 1, v0")
    e(f"v_lshlrev_b32 v{vKa2}, 1, v{vP2}")
    e(f"buffer_load_ushort v{vKV+2}, v{vKa}, s[{srdT}:{srdT+3}], 0 offen")
    e(f"buffer_load_ushort v{vKV2+2}, v{vKa2}, s[{srdT}:{srdT+3}], 0 offen")
    k.lab(LKVD)
    k.lab(LNOKV)
    e(f"s_lshr_b32 s{sRole}, s{sW}, 2")
    e(f"s_and_b32 s{sR}, s{sW}, 3")
    e(f"v_and_b32 v{vM}, 15, v{vLane}")
    e(f"v_lshrrev_b32 v{vG}, 4, v{vLane}")
    vXc = [k.v() for _ in range(4)]; vWc = k.v(); vKVc = k.v()
    vX = vXc; vWb = vWc; vKVb = vKVc
    vOnes = k.v(4)
    for i in range(4): e(f"v_mov_b32 v{vOnes+i}, 0x3f803f80")
    e(f"s_lshl_b32 s{sT}, s{sR}, 11")
    e(f"v_lshlrev_b32 v{vt[0]}, 7, v{vM}")
    e(f"v_lshrrev_b32 v{vt[1]}, 1, v{vM}")
    e(f"v_lshrrev_b32 v{vt[2]}, 1, v{vG}")
    e(f"v_xor_b32 v{vt[1]}, v{vt[1]}, v{vt[2]}")
    e(f"v_and_b32 v{vt[2]}, 1, v{vG}")
    e(f"v_lshl_add_u32 v{vt[0]}, v{vt[1]}, 4, v{vt[0]}")
    e(f"v_lshl_add_u32 v{vt[0]}, v{vt[2]}, 3, v{vt[0]}")
    e(f"v_add_u32 v{vX[0]}, s{sT}, v{vt[0]}")
    e(f"v_xor_b32 v{vX[1]}, 32, v{vX[0]}")
    e(f"v_xor_b32 v{vX[2]}, 64, v{vX[0]}")
    e(f"v_xor_b32 v{vX[3]}, 96, v{vX[0]}")
    e(f"v_lshrrev_b32 v{vt[0]}, 2, v{vLane}")
    e(f"v_and_b32 v{vt[1]}, 3, v{vLane}")
    e(f"v_lshlrev_b32 v{vt[1]}, 3, v{vt[1]}")
    e(f"v_mul_u32_u24 v{vt[2]}, 160, v{vt[0]}")
    e(f"s_mul_i32 s{sT}, s{sRole}, 10240")
    e(f"s_add_u32 s{sT}, s{sT}, 8192")
    e(f"v_add3_u32 v{vWb}, v{vt[2]}, v{vt[1]}, s{sT}")
    e(f"v_lshl_add_u32 v{vKVb}, v{vt[0]}, 5, v{vt[1]}")
    e(f"v_add_u32 v{vKVb}, {K1_KVW}, v{vKVb}")
    acc = [k.v(4) for _ in range(6)]
    for a in acc + csa:
        for i in range(4): e(f"v_mov_b32 v{a+i}, 0")
    LNOKV2 = k.newlab("nokvb")
    e(f"s_cmp_ge_u32 s{sC}, 4")
    e(f"s_cbranch_scc1 {LNOKV2}")
    e("s_waitcnt vmcnt(0)")
    e(f"v_lshlrev_b32 v{vt[0]}, 5, v0")
    e(f"v_add_u32 v{vt[0]}, {K1_KVW}, v{vt[0]}")
    e(f"ds_write_b128 v{vt[0]}, v[{vKV}:{vKV+3}]")
    e(f"ds_write_b128 v{vt[0]}, v[{vKV+4}:{vKV+7}] offset:16")
    e(f"v_cmp_gt_u32 vcc, 640, v{vP2}")
    e(f"s_and_saveexec_b64 s[{sEx}:{sEx+1}], vcc")
    LZ2 = k.newlab("z")
    e(f"s_cbranch_execz {LZ2}")
    e(f"ds_write_b128 v{vt[0]}, v[{vKV2}:{vKV2+3}] offset:16384")
    e(f"ds_write_b128 v{vt[0]}, v[{vKV2+4}:{vKV2+7}] offset:16400")
    k.lab(LZ2)
    e(f"s_mov_b64 exec, s[{sEx}:{sEx+1}]")
    k.lab(LNOKV2)
    e("s_waitcnt lgkmcnt(0)")
    k.srd(srdWS, pWS, WS_USED)
    sKVm = k.s()
    e(f"s_cmp_lt_u32 s{sC}, 4")
    e(f"s_cselect_b32 s{sKVm}, 1, 0")
    e(f"s_cmp_lt_u32 s{sC}, 2")
    e(f"s_cselect_b32 s{sT}, 0, s{sKVm}")
    e(f"s_add_u32 s{sKVm}, s{sKVm}, s{sT}")

    def addr_update():
        o = []
        o.append(f"s_add_u32 s{sSt}, s{sSt}, 1")
        o.append(f"s_and_b32 s{sT3}, s{sSt}, 3")
        o.append(f"s_cmp_eq_u32 s{sT3}, 0")
        o.append(f"s_cselect_b32 s{sT3}, {-3*K1_STAGE & 0xffffffff}, s{sSlot}")
        for i in range(4): o.append(f"v_add_u32 v{vXc[i]}, s{sT3}, v{vXc[i]}")
        o.append(f"v_add_u32 v{vWc}, s{sT3}, v{vWc}")
        o.append(f"v_add_u32 v{vKVc}, 2048, v{vKVc}")
        return o
    def reads(b, kv):
        o = []
        if 'noreads' in EXP: return o
        for s in range(2):
            o.append(f"ds_read_b64 v[{xf[b][s]}:{xf[b][s]+1}], v{vXc[2*s]}")
            o.append(f"ds_read_b64 v[{xf[b][s]+2}:{xf[b][s]+3}], v{vXc[2*s+1]}")
            for f in range(5):
                o.append(f"ds_read_b64_tr_b16 v[{wf[b][s][f]}:{wf[b][s][f]+1}], v{vWc} offset:{s*5120 + f*32}")
                o.append(f"ds_read_b64_tr_b16 v[{wf[b][s][f]+2}:{wf[b][s][f]+3}], v{vWc} offset:{s*5120 + f*32 + 2560}")
            if kv:
                o.append(f"ds_read_b64_tr_b16 v[{kvf[b][s]}:{kvf[b][s]+1}], v{vKVc} offset:{s*1024}")
                o.append(f"ds_read_b64_tr_b16 v[{kvf[b][s]+2}:{kvf[b][s]+3}], v{vKVc} offset:{s*1024 + 512}")
        return o
    def mf(d, a, b_):
        return f"v_mfma_f32_16x16x32_bf16 v[{d}:{d+3}], v[{a}:{a+3}], v[{b_}:{b_+3}], v[{d}:{d+3}]"
    gram = csa[4]
    def compute(b, mode):
        o = []
        if 'nomfma' in EXP: return ["s_nop 0"]
        for s in range(2):
            for f in range(5): o.append(mf(acc[f], wf[b][s][f], xf[b][s]))
            if mode == "kvn": o.append(mf(acc[5], kvf[b][s], xf[b][s]))
            if mode == "kvs": o.append(mf(acc[5], xf[b][s], kvf[b][s]))
            if mode == "h":
                o.append(mf(acc[5], vOnes, xf[b][s]))
                o.append(mf(gram, xf[b][s], xf[b][s]))
        return o
    def mainloop(mode):
        kv = mode in ("kvn", "kvs")
        e("s_barrier")
        k.stamp_at(1)
        e(f"s_mov_b32 s{sSt}, 0")
        e(f"s_mov_b32 s{sSlot}, {K1_STAGE}")
        for x in reads(0, kv) + addr_update(): e(x)
        LOOP = k.newlab("loop"); LLAST = k.newlab("last")
        k.lines.append(".p2align 6")
        k.lab(LOOP)
        for half in range(2):
            e("s_waitcnt lgkmcnt(0)")
            if half == 1:
                e(f"s_cmp_eq_u32 s{sSt}, 10")
                e(f"s_cbranch_scc1 {LLAST}")
            e("s_barrier")
            if k.prof and 'steady' in EXP and half == 1:
                for (val, slot) in ((4, 5), (8, 6)):
                    Lp = k.newlab("p")
                    e(f"s_cmp_lg_u32 s{sSt}, {val}")
                    e(f"s_cbranch_scc1 {Lp}")
                    k.stamp_at(slot)
                    k.lab(Lp)
            for x in interleave(compute(half, mode), reads(1 - half, kv) + addr_update(), lead=2): e(x)
        e(f"s_branch {LOOP}")
        k.lab(LLAST)
        for x in compute(1, mode): e(x)
        e("s_barrier")
    LH = k.newlab("H"); LQN = k.newlab("QN"); LQS = k.newlab("QS"); LQE = k.newlab("qepi")
    e(f"s_cmp_eq_u32 s{sRole}, 1")
    e(f"s_cbranch_scc1 {LH}")
    e(f"s_cmp_eq_u32 s{sKVm}, 1")
    e(f"s_cbranch_scc1 {LQN}")
    e(f"s_cmp_eq_u32 s{sKVm}, 2")
    e(f"s_cbranch_scc1 {LQS}")
    mainloop("q")
    e(f"s_branch {LQE}")
    k.lab(LQN)
    mainloop("kvn")
    e(f"s_branch {LQE}")
    k.lab(LQS)
    mainloop("kvs")
    e(f"s_branch {LQE}")
    k.lab(LH)
    mainloop("h")
    k.stamp_at(2)
    csv = [wf[1][0][0] + 4*f for f in range(5)]
    e(f"v_lshlrev_b32 v{vt[0]}, 4, v{vG}")
    e(f"v_add_u32 v{vt[0]}, {K1_CS}, v{vt[0]}")
    for f in range(5):
        e(f"ds_read_b128 v[{csv[f]}:{csv[f]+3}], v{vt[0]} offset:{f*64}")
    vMean = wf[0][0][0] + 20; vRstd = vMean + 1; cA = vMean + 2; cB = vMean + 3
    e(f"v_and_b32 v{vt[1]}, 3, v{vM}")
    e(f"v_lshrrev_b32 v{vt[2]}, 2, v{vM}")
    e(f"v_cmp_eq_u32 vcc, 1, v{vt[1]}")
    e(f"v_cmp_eq_u32 s[{sEx}:{sEx+1}], 2, v{vt[1]}")
    e(f"v_mov_b32 v{cA}, {hexf(GELU_A)}")
    e(f"v_cndmask_b32 v{vt[3]}, v{gram}, v{gram+1}, vcc")
    e(f"v_cmp_eq_u32 vcc, 3, v{vt[1]}")
    e(f"v_cndmask_b32 v{vt[3]}, v{vt[3]}, v{gram+2}, s[{sEx}:{sEx+1}]")
    e(f"v_cmp_eq_u32 s[{sEx}:{sEx+1}], v{vt[2]}, v{vG}")
    e(f"v_mov_b32 v{cB}, {hexf(GELU_B)}")
    e(f"v_cndmask_b32 v{vt[3]}, v{vt[3]}, v{gram+3}, vcc")
    e(f"v_mov_b32 v{vt[4]}, 0")
    e(f"v_cndmask_b32 v{vt[3]}, v{vt[4]}, v{vt[3]}, s[{sEx}:{sEx+1}]")
    reduce_g(k, vt[3], vt[1], vt[2])
    e(f"v_mul_f32 v{vMean}, {hexf(1.0/640)}, v{acc[5]}")
    e(f"v_mul_f32 v{vt[1]}, {hexf(1.0/640)}, v{vt[3]}")
    e(f"v_fma_f32 v{vt[1]}, -v{vMean}, v{vMean}, v{vt[1]}")
    e(f"v_max_f32 v{vt[1]}, 0, v{vt[1]}")
    e(f"v_add_f32 v{vt[1]}, {hexf(1e-5)}, v{vt[1]}")
    e(f"v_rsq_f32 v{vRstd}, v{vt[1]}")
    k.stamp_at(3)
    e("s_waitcnt lgkmcnt(0)")
    vals = [acc[f]+i for f in range(5) for i in range(4)]
    for f in range(5):
        for i in range(4):
            e(f"v_fma_f32 v{acc[f]+i}, -v{vMean}, v{csv[f]+i}, v{acc[f]+i}")
    for f in range(5):
        for i in range(4):
            e(f"v_mul_f32 v{acc[f]+i}, v{vRstd}, v{acc[f]+i}")
    tmp = [wf[0][0][0]+i for i in range(20)]
    gelu_vals(k, vals, tmp, cA, cB)
    pk = [xf[0][0] + 2*i for i in range(5)]
    for f in range(5):
        e(f"v_cvt_pk_bf16_f32 v{pk[f]}, v{acc[f]}, v{acc[f]+1}")
        e(f"v_cvt_pk_bf16_f32 v{pk[f]+1}, v{acc[f]+2}, v{acc[f]+3}")
    k.stamp_at(4)
    e(f"v_lshlrev_b32 v{vt[0]}, 8, v{vG}")
    e(f"v_lshl_add_u32 v{vt[0]}, v{vM}, 4, v{vt[0]}")
    e(f"s_lshl_b32 s{sT}, s{sRB}, 2")
    e(f"s_add_u32 s{sT}, s{sT}, s{sR}")
    e(f"s_mul_i32 s{sT}, s{sT}, 20480")
    e(f"s_add_u32 s{sT}, s{sT}, {H_OFF}")
    e(f"s_mul_i32 s{sT2}, s{sC}, 5")
    for f in range(5):
        e(f"s_add_u32 s{sT3}, s{sT2}, {f}")
        e(f"s_lshr_b32 s{sIssue}, s{sT3}, 1")
        e(f"s_lshl_b32 s{sIssue}, s{sIssue}, 10")
        e(f"s_and_b32 s{sT3}, s{sT3}, 1")
        e(f"s_lshl_b32 s{sT3}, s{sT3}, 3")
        e(f"s_add_u32 s{sT3}, s{sT3}, s{sIssue}")
        e(f"s_add_u32 s{sT3}, s{sT3}, s{sT}")
        e(f"buffer_store_dwordx2 v[{pk[f]}:{pk[f]+1}], v{vt[0]}, s[{srdWS}:{srdWS+3}], s{sT3} offen")
    e(f"s_branch {END}")
    k.lab(LQE)
    k.stamp_at(2)
    vQs = wf[0][0][0] + 24; vR32 = wf[0][0][0] + 25
    e(f"v_mov_b32 v{vQs}, {hexf(QSCALE)}")
    e(f"s_and_b32 s{sT}, s{sR}, 1")
    e(f"s_lshl_b32 s{sT}, s{sT}, 4")
    e(f"v_add_u32 v{vR32}, s{sT}, v{vM}")
    e(f"s_lshr_b32 s{sT}, s{sR}, 1")
    e(f"s_lshl_b32 s{sT2}, s{sRB}, 1")
    sRT32 = k.s()
    e(f"s_add_u32 s{sRT32}, s{sT}, s{sT2}")
    e(f"s_lshl_b32 s{sT2}, s{sC}, 8")
    e(f"s_add_u32 s{sT}, s{sRT32}, s{sT2}")
    e(f"s_mul_i32 s{sT}, s{sT}, 1280")
    e(f"s_add_u32 s{sT}, s{sT}, {Q_OFF}")
    e(f"v_lshlrev_b32 v{vt[0]}, 8, v{vG}")
    e(f"v_lshl_add_u32 v{vt[0]}, v{vR32}, 3, v{vt[0]}")
    e(f"s_mov_b32 s{sT2}, 80640")
    for f in range(5):
        e(f"v_add_u32 v{vt[1+f]}, {4*f}, v{vG}")
    for f in range(5):
        e(f"v_mul_u32_u24 v{vt[1+f]}, 52, v{vt[1+f]}")
    for f in range(5):
        e(f"v_lshrrev_b32 v{vt[1+f]}, 8, v{vt[1+f]}")
    for f in range(5):
        e(f"v_mad_u32_u24 v{vt[1+f]}, v{vt[1+f]}, s{sT2}, v{vt[0]}")
    k.stamp_at(3)
    for f in range(5):
        for i in range(4):
            e(f"v_mul_f32 v{acc[f]+i}, v{vQs}, v{acc[f]+i}")
    for f in range(5):
        e(f"v_cvt_pk_bf16_f32 v{pk[f]}, v{acc[f]}, v{acc[f]+1}")
        e(f"v_cvt_pk_bf16_f32 v{pk[f]+1}, v{acc[f]+2}, v{acc[f]+3}")
    k.stamp_at(4)
    for f in range(5):
        if f < 4:
            e(f"buffer_store_dwordx2 v[{pk[f]}:{pk[f]+1}], v{vt[1+f]}, s[{srdWS}:{srdWS+3}], s{sT} offen offset:{f*1024}")
        else:
            e(f"s_add_u32 s{sT}, s{sT}, 4096")
            e(f"buffer_store_dwordx2 v[{pk[f]}:{pk[f]+1}], v{vt[1+f]}, s[{srdWS}:{srdWS+3}], s{sT} offen")
    e(f"s_cmp_ge_u32 s{sC}, 4")
    e(f"s_cbranch_scc1 {END}")
    sKB = k.s(); sTL = k.s()
    e(f"s_lshr_b32 s{sKB}, s{sRT32}, 3")
    e(f"s_mul_i32 s{sKB}, s{sKB}, {KV_CHUNK}")
    e(f"s_add_u32 s{sKB}, s{sKB}, {KV_OFF}")
    e(f"s_and_b32 s{sTL}, s{sRT32}, 7")
    a5 = acc[5]
    pv = xf[0][0] + 10
    LC1 = k.newlab("c1"); LC2 = k.newlab("c2"); LC3 = k.newlab("c3")
    def norm2_and_max(src_lo, src_hi, slot_add, reduce):
        e(f"v_mov_b32 v{vt[0]}, 0")
        e(f"s_nop 1")
        e(f"v_dot2c_f32_bf16 v{vt[0]}, v{src_lo}, v{src_lo}")
        e(f"v_dot2c_f32_bf16 v{vt[0]}, v{src_hi}, v{src_hi}")
        e("s_nop 3")
        if reduce:
            reduce_g(k, vt[0], vt[1], vt[2])
        e("s_nop 1")
        for sh in (8, 4, 2, 1):
            e(f"v_max_f32_dpp v{vt[0]}, v{vt[0]}, v{vt[0]} row_ror:{sh} row_mask:0xf bank_mask:0xf")
            e("s_nop 1")
        e(f"s_lshl_b32 s{sT}, s{sRB}, 2")
        e(f"s_add_u32 s{sT}, s{sT}, s{sR}")
        e(f"s_lshl_b32 s{sT}, s{sT}, 2")
        e(f"s_add_u32 s{sT}, s{sT}, {KMAX_OFF + slot_add}")
        e(f"v_mov_b32 v{vt[1]}, 0")
        e(f"s_mov_b64 exec, 1")
        e(f"buffer_store_dword v{vt[0]}, v{vt[1]}, s[{srdWS}:{srdWS+3}], s{sT} offen")
        e(f"s_mov_b64 exec, -1")
    e(f"v_cvt_pk_bf16_f32 v{pv}, v{a5}, v{a5+1}")
    e(f"v_cvt_pk_bf16_f32 v{pv+1}, v{a5+2}, v{a5+3}")
    e(f"s_cmp_eq_u32 s{sC}, 1")
    e(f"s_cbranch_scc1 {LC1}")
    e(f"s_cmp_eq_u32 s{sC}, 2")
    e(f"s_cbranch_scc1 {LC2}")
    e(f"s_cmp_eq_u32 s{sC}, 3")
    e(f"s_cbranch_scc1 {LC3}")
    e(f"v_lshrrev_b32 v{vt[3]}, 1, v{vG}")
    e(f"v_lshlrev_b32 v{vt[3]}, 9, v{vt[3]}")
    e(f"v_and_b32 v{vt[5]}, 1, v{vG}")
    e(f"v_lshl_add_u32 v{vt[3]}, v{vR32}, 4, v{vt[3]}")
    e(f"v_lshl_add_u32 v{vt[3]}, v{vt[5]}, 3, v{vt[3]}")
    e(f"s_lshl_b32 s{sT2}, s{sTL}, 10")
    e(f"s_add_u32 s{sT2}, s{sT2}, s{sKB}")
    e(f"buffer_store_dwordx2 v[{pv}:{pv+1}], v{vt[3]}, s[{srdWS}:{srdWS+3}], s{sT2} offen")
    norm2_and_max(pv, pv+1, 0, True)
    e(f"s_branch {END}")
    k.lab(LC1)
    e(f"v_lshlrev_b32 v{vt[3]}, 3, v{vR32}")
    e(f"s_lshl_b32 s{sT2}, s{sTL}, 8")
    e(f"s_add_u32 s{sT2}, s{sT2}, s{sKB}")
    e(f"s_add_u32 s{sT2}, s{sT2}, 8192")
    e(f"s_mov_b64 exec, 0xffff")
    e(f"buffer_store_dwordx2 v[{pv}:{pv+1}], v{vt[3]}, s[{srdWS}:{srdWS+3}], s{sT2} offen")
    e(f"s_mov_b64 exec, -1")
    e(f"v_cvt_pk_bf16_f32 v{vt[4]}, v{a5}, v{a5}")
    e(f"v_lshlrev_b32 v{vt[4]}, 16, v{vt[4]}")
    e(f"v_mul_f32 v{vt[4]}, {hexf(-math.log2(math.e))}, v{vt[4]}")
    e(f"v_exp_f32 v{vt[4]}, v{vt[4]}")
    e("s_nop 0")
    e(f"v_add_f32 v{vt[4]}, 1.0, v{vt[4]}")
    e(f"v_rcp_f32 v{vt[4]}, v{vt[4]}")
    e("s_nop 0")
    e(f"v_cvt_pk_bf16_f32 v{vt[4]}, v{vt[4]}, v{vt[4]}")
    e(f"v_lshlrev_b32 v{vt[4]}, 16, v{vt[4]}")
    e(f"s_lshl_b32 s{sT}, s{sRB}, 2")
    e(f"s_add_u32 s{sT}, s{sT}, s{sR}")
    e(f"s_lshl_b32 s{sT}, s{sT}, 6")
    e(f"s_add_u32 s{sT}, s{sT}, {G_OFF}")
    e(f"v_lshlrev_b32 v{vt[5]}, 2, v{vM}")
    e(f"s_mov_b64 exec, 0xffff0000")
    e(f"buffer_store_dword v{vt[4]}, v{vt[5]}, s[{srdWS}:{srdWS+3}], s{sT} offen")
    e(f"s_mov_b64 exec, -1")
    norm2_and_max(pv, pv+1, 512, False)
    e(f"s_branch {END}")
    k.lab(LC2)
    def vaddr(dim_add):
        e(f"v_and_b32 v{vt[3]}, 1, v{vG}")
        e(f"v_mul_u32_u24 v{vt[3]}, 384, v{vt[3]}")
        e(f"v_add_u32 v{vt[4]}, {dim_add}, v{vM}")
        e(f"v_lshrrev_b32 v{vt[5]}, 1, v{vG}")
        e(f"v_lshl_add_u32 v{vt[3]}, v{vt[4]}, 4, v{vt[3]}")
        e(f"v_lshl_add_u32 v{vt[3]}, v{vt[5]}, 3, v{vt[3]}")
        e(f"s_mul_i32 s{sT2}, s{sTL}, 1536")
        e(f"s_add_u32 s{sT2}, s{sT2}, s{sKB}")
        e(f"s_add_u32 s{sT2}, s{sT2}, 10240")
        e(f"s_and_b32 s{sT}, s{sR}, 1")
        e(f"s_mul_i32 s{sT}, s{sT}, 768")
        e(f"s_add_u32 s{sT2}, s{sT2}, s{sT}")
    vaddr(0)
    e(f"buffer_store_dwordx2 v[{pv}:{pv+1}], v{vt[3]}, s[{srdWS}:{srdWS+3}], s{sT2} offen")
    e(f"s_branch {END}")
    k.lab(LC3)
    vaddr(16)
    e(f"v_mov_b32 v{vt[6]}, 0x3f803f80")
    e(f"v_cmp_eq_u32 vcc, 4, v{vM}")
    e("s_nop 1")
    e(f"v_cndmask_b32 v{pv}, v{pv}, v{vt[6]}, vcc")
    e(f"v_cndmask_b32 v{pv+1}, v{pv+1}, v{vt[6]}, vcc")
    e(f"s_mov_b32 s{sEx}, 0x00ff00ff")
    e(f"s_mov_b32 s{sEx+1}, 0x00ff00ff")
    e(f"s_mov_b64 exec, s[{sEx}:{sEx+1}]")
    e(f"buffer_store_dwordx2 v[{pv}:{pv+1}], v{vt[3]}, s[{srdWS}:{srdWS+3}], s{sT2} offen")
    k.lab(END)
    if k.prof:
        if 'steady' not in EXP:
            k.stamp_at(5)
            e("s_waitcnt vmcnt(0)")
            k.stamp_at(6)
        k.stamp_flush(pWS, vt[0], sT, sW, 12)
    k.lab(END + "2")
    e("s_endpgm")
    return k
```

```python
from asmlib import *
from layout import *
from k1 import wg_map, interleave, reduce_g
import math, os
EXP = os.environ.get('EXP', '')

KA_SLOT = KV_CHUNK
KA_FLAG = 3*KA_SLOT
KA_LDS = KA_FLAG + 64
KA_THREADS = 320
L_THRESH = 2.0**-60

def gen_attn_body(k, role_base_wg=None):
    e = k.e
    sW = k.s(); sRB = k.s(); sC = k.s(); sT = k.s(); sT2 = k.s(); sT3 = k.s()
    pWS = k.s(2)
    srdWS = k.s(4); srdKV = k.s(4)
    sCh = k.s(); sSlot = k.s(); sPass = k.s(); sEx = k.s(2); sDK = k.s(); sDV = k.s()
    END = k.name + "_aend"
    k.stamp_init(1)
    e(f"s_load_dwordx2 s[{pWS}:{pWS+1}], s[0:1], {KA['ws']}")
    vLane = k.v()
    vt = [k.v() for _ in range(6)]
    e(f"v_lshrrev_b32 v{vt[0]}, 6, v0")
    e(f"v_and_b32 v{vLane}, 63, v0")
    e(f"v_readfirstlane_b32 s{sW}, v{vt[0]}")
    wg_map(k, sRB, sC, sT)
    LCOMP = k.newlab("acomp")
    e(f"s_mov_b32 s{sPass}, 0")
    e(f"s_cmp_lt_u32 s{sW}, 4")
    e(f"s_cbranch_scc1 {LCOMP}")
    mark = k.vmark()
    vL = k.v()
    e(f"v_lshlrev_b32 v{vL}, 4, v{vLane}")
    e(f"v_mov_b32 v{vt[0]}, {KA_FLAG}")
    e(f"v_mov_b32 v{vt[1]}, 0")
    e(f"ds_write_b32 v{vt[0]}, v{vt[1]}")
    e("s_waitcnt lgkmcnt(0)")
    k.srd(srdKV, pWS, KV_SIZE, add=KV_OFF)
    def issue_chunk(ch_s, slot_s):
        e(f"s_mul_i32 s{sT}, s{ch_s}, {KV_CHUNK}")
        for i in range(22):
            if i % 4 == 0:
                e(f"s_add_u32 m0, s{slot_s}, {i*1024}")
                if i: e(f"s_add_u32 s{sT}, s{sT}, 4096")
                else: e("s_nop 0")
            e(f"buffer_load_dwordx4 v{vL}, s[{srdKV}:{srdKV+3}], s{sT} offen offset:{(i%4)*1024} lds")
    LPASS = k.newlab("lpass")
    k.lab(LPASS)
    e(f"s_mov_b32 s{sCh}, 0"); e(f"s_mov_b32 s{sSlot}, 0")
    issue_chunk(sCh, sSlot)
    e(f"s_mov_b32 s{sCh}, 1"); e(f"s_mov_b32 s{sSlot}, {KA_SLOT}")
    issue_chunk(sCh, sSlot)
    e("s_waitcnt vmcnt(22) lgkmcnt(0)")
    e("s_barrier")
    LL = k.newlab("ll"); LN = k.newlab("ln")
    k.lab(LL)
    e("s_waitcnt vmcnt(0)")
    e("s_barrier")
    e(f"s_add_u32 s{sCh}, s{sCh}, 1")
    e(f"s_add_u32 s{sSlot}, s{sSlot}, {KA_SLOT}")
    e(f"s_cmp_eq_u32 s{sSlot}, {3*KA_SLOT}")
    e(f"s_cselect_b32 s{sSlot}, 0, s{sSlot}")
    e(f"s_cmp_ge_u32 s{sCh}, 8")
    e(f"s_cbranch_scc1 {LN}")
    issue_chunk(sCh, sSlot)
    e(f"s_branch {LL}")
    k.lab(LN)
    e("s_barrier")
    e(f"v_mov_b32 v{vt[0]}, {KA_FLAG}")
    e(f"ds_read_b32 v{vt[1]}, v{vt[0]}")
    e("s_waitcnt lgkmcnt(0)")
    e(f"v_readfirstlane_b32 s{sT}, v{vt[1]}")
    e("s_barrier")
    e(f"s_cmp_eq_u32 s{sPass}, 2")
    e(f"s_cbranch_scc1 {END}")
    e(f"s_cmp_eq_u32 s{sPass}, 1")
    LG = k.newlab("lg")
    e(f"s_cbranch_scc1 {LG}")
    e(f"s_cmp_eq_u32 s{sT}, 0")
    e(f"s_cbranch_scc1 {END}")
    k.lab(LG)
    e(f"s_add_u32 s{sPass}, s{sPass}, 1")
    e(f"s_branch {LPASS}")
    k.vreset(mark)
    k.lab(LCOMP)
    Qa = [k.v(4), k.v(4)]; Qb = [k.v(2), k.v(2)]
    negm = [k.v(16), k.v(16)]
    Sx = [k.v(16), k.v(16)]
    P = [k.v(8), k.v(8)]
    O = [k.v(16), k.v(16)]
    Kf = [k.v(4), k.v(4)]; Kb = [k.v(2), k.v(2)]
    Vf = [k.v(8), k.v(8)]
    vKa = k.v(); vKb = k.v(); vV = k.v()
    vQ32 = k.v(); vHf = k.v()
    e(f"v_and_b32 v{vQ32}, 31, v{vLane}")
    e(f"v_lshrrev_b32 v{vHf}, 5, v{vLane}")
    e(f"s_lshl_b32 s{sT}, s{sC}, 2")
    e(f"s_add_u32 s{sT}, s{sT}, s{sW}")
    sHead = k.s()
    e(f"s_mov_b32 s{sHead}, s{sT}")
    e(f"s_lshl_b32 s{sT}, s{sT}, 6")
    e(f"s_lshl_b32 s{sT2}, s{sRB}, 1")
    e(f"s_add_u32 s{sT}, s{sT}, s{sT2}")
    e(f"s_mul_i32 s{sT}, s{sT}, 1280")
    e(f"s_add_u32 s{sT}, s{sT}, {Q_OFF}")
    e(f"v_lshlrev_b32 v{vt[0]}, 9, v{vHf}")
    e(f"v_lshl_add_u32 v{vt[0]}, v{vQ32}, 3, v{vt[0]}")
    e(f"v_lshlrev_b32 v{vt[1]}, 3, v{vQ32}")
    e(f"v_lshlrev_b32 v{vt[2]}, 31, v{vHf}")
    e(f"v_or_b32 v{vt[1]}, v{vt[1]}, v{vt[2]}")
    e(f"v_lshlrev_b32 v{vt[2]}, 2, v{vLane}")
    e("s_waitcnt lgkmcnt(0)")
    k.srd(srdWS, pWS, WS_USED)
    for t in range(2):
        e(f"buffer_load_dwordx2 v[{Qa[t]}:{Qa[t]+1}], v{vt[0]}, s[{srdWS}:{srdWS+3}], s{sT} offen offset:{t*1280}")
        e(f"buffer_load_dwordx2 v[{Qa[t]+2}:{Qa[t]+3}], v{vt[0]}, s[{srdWS}:{srdWS+3}], s{sT} offen offset:{t*1280+256}")
        e(f"buffer_load_dwordx2 v[{Qb[t]}:{Qb[t]+1}], v{vt[1]}, s[{srdWS}:{srdWS+3}], s{sT} offen offset:{t*1280+1024}")
    e(f"s_mov_b32 s{sT2}, {KMAX_OFF}")
    km = [Sx[0]+i for i in range(4)]
    for i in range(4):
        e(f"buffer_load_dword v{km[i]}, v{vt[2]}, s[{srdWS}:{srdWS+3}], s{sT2} offen offset:{i*256}")
    e(f"v_lshlrev_b32 v{vKa}, 4, v{vLane}")
    e(f"v_lshlrev_b32 v{vKb}, 3, v{vQ32}")
    e(f"v_add_u32 v{vKb}, 8192, v{vKb}")
    e(f"v_min_u32 v{vt[3]}, 23, v{vQ32}")
    e(f"v_mul_u32_u24 v{vt[4]}, 384, v{vHf}")
    e(f"v_lshl_add_u32 v{vV}, v{vt[3]}, 4, v{vt[4]}")
    e(f"v_add_u32 v{vV}, 10240, v{vV}")
    e("s_waitcnt vmcnt(0)")
    e(f"v_max_f32 v{km[0]}, v{km[0]}, v{km[1]}")
    e(f"v_max_f32 v{km[2]}, v{km[2]}, v{km[3]}")
    for r in (km[0], km[2]):
        e("s_nop 1")
        for sh in (8, 4, 2, 1):
            e(f"v_max_f32_dpp v{r}, v{r}, v{r} row_ror:{sh} row_mask:0xf bank_mask:0xf")
            e("s_nop 1")
        reduce_g(k, r, vt[3], vt[4], op="v_max_f32")
    vK2 = vt[5]
    e(f"v_add_f32 v{vK2}, v{km[0]}, v{km[2]}")
    for t in range(2):
        a = Sx[1] + t
        e(f"v_mov_b32 v{a}, 0")
        e("s_nop 0")
        for i in range(4): e(f"v_dot2c_f32_bf16 v{a}, v{Qa[t]+i}, v{Qa[t]+i}")
        for i in range(2): e(f"v_dot2c_f32_bf16 v{a}, v{Qb[t]+i}, v{Qb[t]+i}")
        e("s_nop 3")
        e(f"v_mov_b32 v{vt[3]}, v{a}")
        e(f"v_mov_b32 v{vt[4]}, v{a}")
        e("s_nop 1")
        e(f"v_permlane32_swap_b32 v{vt[3]}, v{vt[4]}")
        e("s_nop 1")
        e(f"v_add_f32 v{a}, v{vt[3]}, v{vt[4]}")
        e(f"v_mul_f32 v{a}, v{a}, v{vK2}")
        e(f"v_sqrt_f32 v{a}, v{a}")
        e("s_nop 0")
        e(f"v_sub_f32 v{a}, 0, v{a}")
        for i in range(16): e(f"v_mov_b32 v{negm[t]+i}, v{a}")
    k.stamp_at(1)

    def kreads(buf, tl):
        return [f"ds_read_b128 v[{Kf[buf]}:{Kf[buf]+3}], v{vKa} offset:{tl*1024}",
                f"ds_read_b64 v[{Kb[buf]}:{Kb[buf]+1}], v{vKb} offset:{tl*256}"]
    def vreads(buf, tl):
        return [f"ds_read_b128 v[{Vf[buf]}:{Vf[buf]+3}], v{vV} offset:{tl*1536}",
                f"ds_read_b128 v[{Vf[buf]+4}:{Vf[buf]+7}], v{vV} offset:{tl*1536+768}"]
    def qk(t, kb, zeroC=False):
        c = "0" if zeroC else f"v[{negm[t]}:{negm[t]+15}]"
        return [f"v_mfma_f32_32x32x16_bf16 v[{Sx[t]}:{Sx[t]+15}], v[{Kf[kb]}:{Kf[kb]+3}], v[{Qa[t]}:{Qa[t]+3}], {c}",
                f"v_mfma_f32_32x32x8_bf16 v[{Sx[t]}:{Sx[t]+15}], v[{Kb[kb]}:{Kb[kb]+1}], v[{Qb[t]}:{Qb[t]+1}], v[{Sx[t]}:{Sx[t]+15}]"]
    def pv(t, vb):
        return [f"v_mfma_f32_32x32x16_bf16 v[{O[t]}:{O[t]+15}], v[{Vf[vb]}:{Vf[vb]+3}], v[{P[t]}:{P[t]+3}], v[{O[t]}:{O[t]+15}]",
                f"v_mfma_f32_32x32x16_bf16 v[{O[t]}:{O[t]+15}], v[{Vf[vb]+4}:{Vf[vb]+7}], v[{P[t]+4}:{P[t]+7}], v[{O[t]}:{O[t]+15}]"]
    CVTD = int(os.environ.get('CVTD', '1'))
    def softmax(t):
        o = []
        s_ = Sx[t]
        for j in range(8 + CVTD):
            if j < 8:
                o.append(f"v_exp_f32 v{s_+2*j}, v{s_+2*j}")
                o.append(f"v_exp_f32 v{s_+2*j+1}, v{s_+2*j+1}")
            c = j - CVTD
            if c >= 0:
                o.append(f"v_cvt_pk_bf16_f32 v{P[t]+c}, v{s_+2*c}, v{s_+2*c+1}")
        return o
    MPOS = [int(x) for x in os.environ.get('MPOS', '0,5,11,17').split(',')]
    def phase(tv, mf, extra):
        v = softmax(tv)
        pos = {MPOS[i]: mf[i] for i in range(4)}
        out = []
        ex = list(extra) if 'nolds' not in EXP else []
        for i, ins in enumerate(v):
            if i in pos: out.append(pos[i])
            out.append(ins)
            if ex and ins.startswith("v_exp") and i >= 1 and i not in pos and (i+1) not in pos:
                out.append(ex.pop(0))
        out += ex
        return out

    LPASSC = k.newlab("cpass"); LMAXP = k.newlab("maxp"); LEND = k.newlab("cend")
    k.lab(LPASSC)
    e(f"s_cmp_eq_u32 s{sPass}, 1")
    e(f"s_cbranch_scc1 {LMAXP}")
    for t in range(2):
        for i in range(16): e(f"v_mov_b32 v{O[t]+i}, 0")
    for i in range(8): e(f"v_mov_b32 v{P[1]+i}, 0")
    for i in range(8): e(f"v_mov_b32 v{Vf[1]+i}, 0")
    e("s_barrier")
    k.stamp_at(2)
    for x in kreads(0, 0): e(x)
    e("s_waitcnt lgkmcnt(0)")
    for x in qk(0, 0): e(x)
    e(f"s_mov_b32 s{sCh}, 0")
    e(f"s_mov_b32 s{sDK}, {KA_SLOT}")
    e("s_nop 7"); e("s_nop 3")
    LOOP = k.newlab("aloop")
    k.lines.append(".p2align 6")
    k.lab(LOOP)
    for tl in range(8):
        b = tl % 2
        pre = []
        if tl == 7:
            Lnb = k.newlab("nb")
            e(f"s_cmp_eq_u32 s{sCh}, 7")
            e(f"s_cbranch_scc1 {Lnb}")
            e("s_barrier")
            k.lab(Lnb)
            e(f"v_add_u32 v{vKa}, s{sDK}, v{vKa}")
            e(f"v_add_u32 v{vKb}, s{sDK}, v{vKb}")
            rd = kreads(1 - b, 0) + vreads(b, tl)
        else:
            rd = kreads(1 - b, tl + 1) + vreads(b, tl)
        A = phase(0, qk(1, b) + pv(1, 1 - b), rd)
        for x in A: e(x)
        e("s_waitcnt lgkmcnt(0)")
        B = phase(1, qk(0, 1 - b) + pv(0, b), [])
        for x in B: e(x)
        if tl == 7:
            e(f"v_add_u32 v{vV}, s{sDK}, v{vV}")
            e(f"s_add_u32 s{sCh}, s{sCh}, 1")
            e(f"s_add_u32 s{sT}, s{sCh}, 1")
            e(f"s_mul_i32 s{sT2}, s{sT}, 0xaaab")
            e(f"s_lshr_b32 s{sT2}, s{sT2}, 17")
            e(f"s_mul_i32 s{sT2}, s{sT2}, 3")
            e(f"s_cmp_eq_u32 s{sT}, s{sT2}")
            e(f"s_mov_b32 s{sDK}, {KA_SLOT}")
            e(f"s_cselect_b32 s{sDK}, {(-2*KA_SLOT) & 0xffffffff}, s{sDK}")
            e(f"s_cmp_lt_u32 s{sCh}, 8")
            e(f"s_cbranch_scc1 {LOOP}")
    for x in pv(1, 1): e(x)
    k.stamp_at(3)
    e("s_nop 15")
    lreg = [vt[0], vt[1]]
    for t in range(2):
        e(f"v_mov_b32 v{vt[3]}, v{O[t]+8}")
        e(f"v_mov_b32 v{vt[4]}, v{O[t]+8}")
        e("s_nop 1")
        e(f"v_permlane32_swap_b32 v{vt[3]}, v{vt[4]}")
        e("s_nop 1")
        e(f"v_mov_b32 v{lreg[t]}, v{vt[4]}")
    e(f"v_min_f32 v{vt[2]}, v{lreg[0]}, v{lreg[1]}")
    e(f"v_mov_b32 v{vt[3]}, {hexf(L_THRESH)}")
    e(f"v_cmp_nge_f32 vcc, v{vt[2]}, v{vt[3]}")
    e(f"s_cmp_eq_u64 vcc, 0")
    LOK = k.newlab("ok")
    e(f"s_cbranch_scc1 {LOK}")
    e(f"v_mov_b32 v{vt[2]}, {KA_FLAG}")
    e(f"v_mov_b32 v{vt[3]}, 1")
    e(f"ds_write_b32 v{vt[2]}, v{vt[3]}")
    k.lab(LOK)
    LDEC = k.newlab("dec")
    k.lab(LDEC)
    e("s_waitcnt lgkmcnt(0)")
    e("s_barrier")
    e(f"v_mov_b32 v{vt[2]}, {KA_FLAG}")
    e(f"ds_read_b32 v{vt[3]}, v{vt[2]}")
    e("s_waitcnt lgkmcnt(0)")
    e(f"v_readfirstlane_b32 s{sT}, v{vt[3]}")
    e("s_barrier")
    e(f"s_cmp_eq_u32 s{sPass}, 2")
    e(f"s_cbranch_scc1 {LEND}")
    e(f"s_cmp_eq_u32 s{sPass}, 1")
    LG2 = k.newlab("g2")
    e(f"s_cbranch_scc1 {LG2}")
    e(f"s_cmp_eq_u32 s{sT}, 0")
    e(f"s_cbranch_scc1 {LEND}")
    k.lab(LG2)
    e(f"s_add_u32 s{sPass}, s{sPass}, 1")
    e(f"v_lshlrev_b32 v{vKa}, 4, v{vLane}")
    e(f"v_lshlrev_b32 v{vKb}, 3, v{vQ32}")
    e(f"v_add_u32 v{vKb}, 8192, v{vKb}")
    e(f"v_min_u32 v{vt[3]}, 23, v{vQ32}")
    e(f"v_mul_u32_u24 v{vt[4]}, 384, v{vHf}")
    e(f"v_lshl_add_u32 v{vV}, v{vt[3]}, 4, v{vt[4]}")
    e(f"v_add_u32 v{vV}, 10240, v{vV}")
    e(f"s_branch {LPASSC}")
    k.lab(LMAXP)
    mx = [O[0], O[1]]
    for t in range(2): e(f"v_mov_b32 v{mx[t]}, 0xff800000")
    e("s_barrier")
    e(f"s_mov_b32 s{sCh}, 0")
    e(f"s_mov_b32 s{sDK}, {KA_SLOT}")
    LM = k.newlab("mloop")
    k.lab(LM)
    for tl in range(8):
        if tl == 7:
            pass
        for x in kreads(0, tl): e(x)
        if tl == 7:
            Lnb = k.newlab("nb")
            e("s_waitcnt lgkmcnt(0)")
            e(f"s_cmp_eq_u32 s{sCh}, 7")
            e(f"s_cbranch_scc1 {Lnb}")
            e("s_barrier")
            k.lab(Lnb)
        e("s_waitcnt lgkmcnt(0)")
        for t in range(2):
            for x in qk(t, 0, zeroC=True): e(x)
        e("s_nop 15"); e("s_nop 7")
        for t in range(2):
            for i in range(16): e(f"v_max_f32 v{mx[t]}, v{mx[t]}, v{Sx[t]+i}")
    e(f"v_add_u32 v{vKa}, s{sDK}, v{vKa}")
    e(f"v_add_u32 v{vKb}, s{sDK}, v{vKb}")
    e(f"s_add_u32 s{sCh}, s{sCh}, 1")
    e(f"s_add_u32 s{sT}, s{sCh}, 1")
    e(f"s_mul_i32 s{sT2}, s{sT}, 0xaaab")
    e(f"s_lshr_b32 s{sT2}, s{sT2}, 17")
    e(f"s_mul_i32 s{sT2}, s{sT2}, 3")
    e(f"s_cmp_eq_u32 s{sT}, s{sT2}")
    e(f"s_mov_b32 s{sDK}, {KA_SLOT}")
    e(f"s_cselect_b32 s{sDK}, {(-2*KA_SLOT) & 0xffffffff}, s{sDK}")
    e(f"s_cmp_lt_u32 s{sCh}, 8")
    e(f"s_cbranch_scc1 {LM}")
    for t in range(2):
        e(f"v_mov_b32 v{vt[3]}, v{mx[t]}")
        e(f"v_mov_b32 v{vt[4]}, v{mx[t]}")
        e("s_nop 1")
        e(f"v_permlane32_swap_b32 v{vt[3]}, v{vt[4]}")
        e("s_nop 1")
        e(f"v_max_f32 v{vt[3]}, v{vt[3]}, v{vt[4]}")
        e(f"v_sub_f32 v{vt[3]}, 0, v{vt[3]}")
        for i in range(16): e(f"v_mov_b32 v{negm[t]+i}, v{vt[3]}")
    e(f"s_branch {LDEC}")
    k.lab(LEND)
    k.stamp_at(4)
    for t in range(2):
        e(f"v_rcp_f32 v{lreg[t]}, v{lreg[t]}")
    e("s_nop 0")
    for t in range(2):
        for i in range(12): e(f"v_mul_f32 v{O[t]+i}, v{lreg[t]}, v{O[t]+i}")
    for t in range(2):
        for j in range(6): e(f"v_cvt_pk_bf16_f32 v{P[t]+j}, v{O[t]+2*j}, v{O[t]+2*j+1}")
    e(f"v_lshrrev_b32 v{vt[0]}, 4, v{vQ32}")
    e(f"v_mul_u32_u24 v{vt[0]}, 20480, v{vt[0]}")
    e(f"v_and_b32 v{vt[1]}, 15, v{vQ32}")
    e(f"v_lshl_add_u32 v{vt[0]}, v{vt[1]}, 4, v{vt[0]}")
    e(f"s_mul_i32 s{sT}, s{sRB}, {4*20480}")
    e(f"s_add_u32 s{sT}, s{sT}, {O_OFF}")
    e(f"s_mul_i32 s{sT2}, s{sHead}, 5")
    for j in range(3):
        z = vt[1]; a = vt[2]; b_ = vt[3]
        e(f"v_add_u32 v{z}, s{sT2}, v{vHf}")
        if j: e(f"v_add_u32 v{z}, {2*j}, v{z}")
        e(f"v_lshrrev_b32 v{a}, 3, v{z}")
        e(f"v_lshlrev_b32 v{a}, 10, v{a}")
        e(f"v_and_b32 v{b_}, 3, v{z}")
        e(f"v_lshl_add_u32 v{a}, v{b_}, 8, v{a}")
        e(f"v_bfe_u32 v{b_}, v{z}, 2, 1")
        e(f"v_lshl_add_u32 v{a}, v{b_}, 3, v{a}")
        e(f"v_add_u32 v{vt[4]}, v{a}, v{vt[0]}")
        if j == 2: e(f"s_mov_b32 exec_hi, 0")
        e(f"buffer_store_dwordx2 v[{P[0]+2*j}:{P[0]+2*j+1}], v{vt[4]}, s[{srdWS}:{srdWS+3}], s{sT} offen")
        e(f"s_add_u32 s{sT3}, s{sT}, {2*20480}")
        e(f"buffer_store_dwordx2 v[{P[1]+2*j}:{P[1]+2*j+1}], v{vt[4]}, s[{srdWS}:{srdWS+3}], s{sT3} offen")
        e("s_nop 1")
    e("s_mov_b64 exec, -1")
    k.lab(END)
    if k.prof:
        k.stamp_at(5)
        e("s_waitcnt vmcnt(0)")
        k.stamp_at(6)
        k.stamp_flush(pWS, vt[0], sT, sW, 5)

def gen_ka():
    k = Kern("ka_kernel")
    k.e("s_cmp_ge_u32 s2, 256")
    k.e(f"s_cbranch_scc1 {k.name}_x")
    gen_attn_body(k)
    k.lab(k.name + "_x")
    k.e("s_endpgm")
    return k
```

```python
from asmlib import *
from layout import *
from k1 import wg_map, interleave, reduce_g, gelu_vals, GELU_A, GELU_B
import math, os
EXP = os.environ.get('EXP', '')
KG_THREADS = 384
KG_LDS = 73728

class Cfg:
    def __init__(self, name, NF, RF, KS, wname, wstride, wbytes, act_off, act_size, act_ks, shift, epi, nslots, slot):
        self.name = name; self.NF = NF; self.RF = RF; self.KS = KS
        self.NST = (KS + 1) // 2
        if self.NST % 2: self.NST += 1
        self.wname = wname; self.wstride = wstride; self.wbytes = wbytes
        self.act_off = act_off; self.act_size = act_size; self.act_ks = act_ks
        self.shift = shift; self.epi = epi; self.nslots = nslots; self.prof_slot = slot
        self.rowb = NF * 32
        self.stage = 64 * self.rowb
        self.lpr = NF * 2
        self.rpi = 64 // self.lpr
        self.ninstr = -(-64 // self.rpi)

CFG_W2 = Cfg("w2", 5, 1, 20, "w2", 1280, D*D*2, H_OFF, ACT_SIZE, 20, True, "w2", 6, 2)
CFG_W3 = Cfg("w3", 7, 2, 20, "w3", 3456, D*F*2, X1_OFF, ACT_SIZE, 20, False, "w3", 5, 3)
CFG_W4 = Cfg("w4", 5, 1, 54, "w4", 1280, F*D*2, H3_OFF, H3_SIZE, 54, False, "w4", 6, 4)
CFG_WO = Cfg("wo", 5, 1, 20, "wo", 1280, D*D*2, O_OFF, ACT_SIZE, 20, False, "wo", 6, 5)

def gen_gemm_body(k, cfg, END):
    e = k.e
    NF, RF, NST, NSL = cfg.NF, cfg.RF, cfg.NST, cfg.nslots
    CSOFF = NSL * cfg.stage
    assert CSOFF + 512 <= KG_LDS
    sW = k.s(); sRB = k.s(); sC = k.s(); sT = k.s(); sT2 = k.s(); sT3 = k.s()
    pW = k.s(2); pWS = k.s(2); pX = k.s(2); pOut = k.s(2)
    srdW = k.s(4); srdA = k.s(4); srdWS = k.s(4); srdX = k.s(4)
    sSt = k.s(); sSlot = k.s(); sRd = k.s(); sOff = k.s(); sKs = k.s(); sDelta = k.s()
    sEx = k.s(2)
    k.stamp_init(cfg.prof_slot)
    e(f"s_load_dwordx2 s[{pW}:{pW+1}], s[0:1], {KA[cfg.wname]}")
    e(f"s_load_dwordx2 s[{pWS}:{pWS+1}], s[0:1], {KA['ws']}")
    if cfg.epi == "w2": e(f"s_load_dwordx2 s[{pX}:{pX+1}], s[0:1], {KA['x']}")
    if cfg.epi == "wo": e(f"s_load_dwordx2 s[{pOut}:{pOut+1}], s[0:1], {KA['out']}")
    vLane = k.v(); vM = k.v(); vG = k.v()
    vt = [k.v() for _ in range(8)]
    e(f"v_lshrrev_b32 v{vt[0]}, 6, v0")
    e(f"v_and_b32 v{vLane}, 63, v0")
    e(f"v_readfirstlane_b32 s{sW}, v{vt[0]}")
    if cfg.epi == "w3":
        e(f"s_and_b32 s{sT}, s2, 6")
        e(f"s_lshl_b32 s{sRB}, s{sT}, 1")
        e(f"s_bfe_u32 s{sC}, s2, 0x20006")
        e(f"s_add_u32 s{sRB}, s{sRB}, s{sC}")
        e(f"s_and_b32 s{sC}, s2, 1")
        e(f"s_lshl_b32 s{sC}, s{sC}, 3")
        e(f"s_bfe_u32 s{sT}, s2, 0x30003")
        e(f"s_add_u32 s{sC}, s{sC}, s{sT}")
    else:
        wg_map(k, sRB, sC, sT)
    LCOMP = k.newlab("gcomp")
    e(f"s_cmp_lt_u32 s{sW}, 4")
    e(f"s_cbranch_scc1 {LCOMP}")
    mark = k.vmark()
    vWl = [k.v() for _ in range(4)]
    lpr, rpi = cfg.lpr, cfg.rpi
    magic = (65536 + lpr - 1) // lpr
    for l in range(64): assert (l * magic) >> 16 == l // lpr
    ldsstep = rpi * cfg.rowb
    gstep = rpi * cfg.wstride
    e(f"v_mul_u32_u24 v{vt[0]}, {magic}, v{vLane}")
    e(f"v_lshrrev_b32 v{vt[0]}, 16, v{vt[0]}")
    e(f"v_mul_u32_u24 v{vt[1]}, {lpr}, v{vt[0]}")
    e(f"v_sub_u32 v{vt[1]}, v{vLane}, v{vt[1]}")
    e(f"v_mul_u32_u24 v{vt[0]}, {cfg.wstride}, v{vt[0]}")
    e(f"v_lshl_add_u32 v{vt[0]}, v{vt[1]}, 4, v{vt[0]}")
    e(f"s_mul_i32 s{sT2}, s{sC}, {cfg.rowb}")
    e(f"v_add_u32 v{vWl[0]}, s{sT2}, v{vt[0]}")
    umax = max(1, min(4, 4095 // ldsstep + 1))
    for u in range(1, umax):
        e(f"v_add_u32 v{vWl[u]}, {u*(gstep-ldsstep)}, v{vWl[0]}")
    MA = k.s(2); MB = k.s(2)
    full = rpi * lpr
    lastrows = 64 - (cfg.ninstr - 1) * rpi
    def setmask(r, n):
        m = (1 << n) - 1
        e(f"s_mov_b32 s{r}, {m & 0xffffffff}")
        e(f"s_mov_b32 s{r+1}, {m >> 32}")
    setmask(MA, full); setmask(MB, lastrows * lpr)
    n0 = (cfg.ninstr + 1) // 2
    plan = [(0, n0), (n0, cfg.ninstr - n0)]
    e(f"s_mov_b32 s{sOff}, 0")
    if cfg.epi == "w3":
        vCW = k.v(); vCWc = k.v()
        nfl = [(NF + 1) // 2, NF // 2]
        cwf = [[k.v(4) for _ in range(2)] for _ in range(nfl[0])]
        cacc = [k.v(4) for _ in range(nfl[0])]
        vOn = k.v(4)
        for i in range(4): e(f"v_mov_b32 v{vOn+i}, 0x3f803f80")
        for a_ in cacc:
            for i in range(4): e(f"v_mov_b32 v{a_+i}, 0")
        e(f"v_lshrrev_b32 v{vt[0]}, 2, v{vLane}")
        e(f"v_and_b32 v{vt[1]}, 3, v{vLane}")
        e(f"v_lshlrev_b32 v{vt[1]}, 3, v{vt[1]}")
        e(f"v_mul_u32_u24 v{vt[2]}, {cfg.rowb}, v{vt[0]}")
        e(f"s_sub_u32 s{sT}, s{sW}, 4")
        e(f"s_lshl_b32 s{sT}, s{sT}, 5")
        e(f"v_add3_u32 v{vCW}, v{vt[2]}, v{vt[1]}, s{sT}")
    e("s_waitcnt lgkmcnt(0)")
    k.srd(srdW, pW, cfg.wbytes)
    def issue(which, slot):
        i0, n = plan[which]
        i = i0
        e(f"s_mov_b64 exec, s[{MA}:{MA+1}]")
        while i < i0 + n:
            cnt = min(umax, i0 + n - i)
            e(f"s_add_u32 m0, s{slot}, {i*ldsstep}")
            e(f"s_add_u32 s{sT}, s{sOff}, {i*gstep}")
            for u in range(cnt):
                if i + u == cfg.ninstr - 1 and lastrows != rpi: e(f"s_mov_b64 exec, s[{MB}:{MB+1}]")
                e(f"buffer_load_dwordx4 v{vWl[u]}, s[{srdW}:{srdW+3}], s{sT} offen offset:{u*ldsstep} lds")
            i += cnt
        e(f"s_mov_b64 exec, -1")
        e(f"s_add_u32 s{sOff}, s{sOff}, {64*cfg.wstride}")
    def colsum(which, slot):
        if cfg.epi != "w3": return
        e(f"v_add_u32 v{vCWc}, s{slot}, v{vCW}")
        for j in range(nfl[which]):
            for s_ in range(2):
                off = s_*32*cfg.rowb + j*64
                e(f"ds_read_b64_tr_b16 v[{cwf[j][s_]}:{cwf[j][s_]+1}], v{vCWc} offset:{off}")
                e(f"ds_read_b64_tr_b16 v[{cwf[j][s_]+2}:{cwf[j][s_]+3}], v{vCWc} offset:{off + 16*cfg.rowb}")
        e("s_waitcnt lgkmcnt(0)")
        for s_ in range(2):
            for j in range(nfl[which]):
                e(f"v_mfma_f32_16x16x32_bf16 v[{cacc[j]}:{cacc[j]+3}], v[{cwf[j][s_]}:{cwf[j][s_]+3}], v[{vOn}:{vOn+3}], v[{cacc[j]}:{cacc[j]+3}]")
    def nextslot(r):
        e(f"s_add_u32 s{r}, s{r}, {cfg.stage}")
        e(f"s_cmp_eq_u32 s{r}, {NSL*cfg.stage}")
        e(f"s_cselect_b32 s{r}, 0, s{r}")
    L1 = k.newlab("ld")
    e(f"s_cmp_eq_u32 s{sW}, 5")
    e(f"s_cbranch_scc1 {L1}")
    for which in range(2):
        if which == 1: k.lab(L1)
        n1 = plan[which][1]
        pre = min(NSL, NST)
        for st in range(2):
            e(f"s_mov_b32 s{sSlot}, {st*cfg.stage}")
            issue(which, sSlot)
        e(f"s_waitcnt vmcnt({n1})")
        e("s_barrier")
        k.stamp_at(1)
        for st in range(2, pre):
            e(f"s_mov_b32 s{sSlot}, {st*cfg.stage}")
            issue(which, sSlot)
        e(f"s_mov_b32 s{sRd}, 0")
        colsum(which, sRd)
        nextslot(sRd)
        e(f"s_mov_b32 s{sSt}, 1")
        e(f"s_mov_b32 s{sSlot}, 0")
        jlast_issue = NST - NSL
        if jlast_issue >= 1:
            LOOP = k.newlab("lloop")
            k.lab(LOOP)
            e(f"s_waitcnt vmcnt({(NSL-2)*n1})")
            e("s_barrier")
            issue(which, sSlot)
            colsum(which, sRd)
            nextslot(sSlot); nextslot(sRd)
            e(f"s_add_u32 s{sSt}, s{sSt}, 1")
            e(f"s_cmp_le_u32 s{sSt}, {jlast_issue}")
            e(f"s_cbranch_scc1 {LOOP}")
        for j in range(max(1, jlast_issue + 1), NST):
            allowed = (NST - 1) - j
            e(f"s_waitcnt vmcnt({allowed*n1})")
            e("s_barrier")
            colsum(which, sRd)
            if j < NST - 1 and cfg.epi == "w3": nextslot(sRd)
        k.stamp_at(2)
        if cfg.epi == "w3":
            e("s_nop 7")
            e(f"v_lshrrev_b32 v{vt[0]}, 4, v{vLane}")
            e(f"v_lshlrev_b32 v{vt[0]}, 4, v{vt[0]}")
            e(f"s_sub_u32 s{sT}, s{sW}, 4")
            e(f"s_lshl_b32 s{sT}, s{sT}, 6")
            e(f"s_add_u32 s{sT}, s{sT}, {CSOFF}")
            e(f"v_add_u32 v{vt[0]}, s{sT}, v{vt[0]}")
            e(f"s_mov_b32 s{sEx}, 0x00010001")
            e(f"s_mov_b32 s{sEx+1}, 0x00010001")
            e(f"s_mov_b64 exec, s[{sEx}:{sEx+1}]")
            for j in range(nfl[which]):
                e(f"ds_write_b128 v{vt[0]}, v[{cacc[j]}:{cacc[j]+3}] offset:{j*128}")
            e(f"s_mov_b64 exec, -1")
            e("s_waitcnt lgkmcnt(0)")
            e("s_barrier")
        e(f"s_branch {END}")
    k.vreset(mark)
    k.lab(LCOMP)
    acc = [[k.v(4) for _ in range(NF)] for _ in range(RF)]
    wf = [[k.v(4) for _ in range(NF)] for _ in range(2)]
    af = [[k.v(4) for _ in range(RF)] for _ in range(4)]
    vWc = k.v()
    nsh = 4 if cfg.shift else 1
    vA = [[k.v() for _ in range(RF)] for _ in range(nsh)]
    e(f"v_and_b32 v{vM}, 15, v{vLane}")
    e(f"v_lshrrev_b32 v{vG}, 4, v{vLane}")
    sRT = k.s()
    if RF == 1:
        e(f"s_lshl_b32 s{sRT}, s{sRB}, 2")
        e(f"s_add_u32 s{sRT}, s{sRT}, s{sW}")
    else:
        e(f"s_lshl_b32 s{sRT}, s{sRB}, 3")
        e(f"s_lshl_b32 s{sT}, s{sW}, 1")
        e(f"s_add_u32 s{sRT}, s{sRT}, s{sT}")
    tstride = cfg.act_ks * 1024
    e(f"v_lshlrev_b32 v{vt[0]}, 8, v{vG}")
    if not cfg.shift:
        e(f"v_lshl_add_u32 v{vt[0]}, v{vM}, 4, v{vt[0]}")
        e(f"s_mul_i32 s{sT}, s{sRT}, {tstride}")
        for r in range(RF):
            e(f"v_add_u32 v{vA[0][r]}, s{sT}, v{vt[0]}")
            if r + 1 < RF: e(f"s_add_u32 s{sT}, s{sT}, {tstride}")
    else:
        e(f"s_lshl_b32 s{sT}, s{sRT}, 4")
        e(f"v_add_u32 v{vt[1]}, s{sT}, v{vM}")
        e(f"s_mov_b32 s{sT2}, {tstride}")
        for gi, sh in enumerate((-1, 1, -2, 2)):
            e(f"v_add_u32 v{vt[2]}, {sh}, v{vt[1]}")
            e(f"v_ashrrev_i32 v{vt[3]}, 4, v{vt[2]}")
            e(f"v_and_b32 v{vt[4]}, 15, v{vt[2]}")
            e(f"v_mul_lo_u32 v{vt[3]}, v{vt[3]}, s{sT2}")
            e(f"v_lshl_add_u32 v{vt[4]}, v{vt[4]}, 4, v{vt[0]}")
            e(f"v_cmp_gt_i32 vcc, 0, v{vt[2]}")
            e(f"v_add_u32 v{vt[3]}, v{vt[3]}, v{vt[4]}")
            e(f"v_mov_b32 v{vt[5]}, 0x80000000")
            e(f"v_cndmask_b32 v{vA[gi][0]}, v{vt[3]}, v{vt[5]}, vcc")
    e(f"v_lshrrev_b32 v{vt[0]}, 2, v{vLane}")
    e(f"v_and_b32 v{vt[1]}, 3, v{vLane}")
    e(f"v_lshlrev_b32 v{vt[1]}, 3, v{vt[1]}")
    e(f"v_mul_u32_u24 v{vt[2]}, {cfg.rowb}, v{vt[0]}")
    e(f"v_add_u32 v{vWc}, v{vt[2]}, v{vt[1]}")
    e("s_waitcnt lgkmcnt(0)")
    k.srd(srdA, pWS, cfg.act_size, add=cfg.act_off)
    k.srd(srdWS, pWS, WS_USED)
    D8 = None
    vD = k.v()
    e(f"v_lshlrev_b32 v{vD}, 8, v{vG}")
    e(f"v_lshl_add_u32 v{vD}, v{vM}, 4, v{vD}")
    def dfrag_soff(dst, base_off, f, ks_per_tile, cf0_s, rt_add=0):
        e(f"s_add_u32 s{sT3}, s{cf0_s}, {f}")
        e(f"s_lshr_b32 s{dst}, s{sT3}, 1")
        e(f"s_lshl_b32 s{dst}, s{dst}, 10")
        e(f"s_and_b32 s{sT3}, s{sT3}, 1")
        e(f"s_lshl_b32 s{sT3}, s{sT3}, 3")
        e(f"s_add_u32 s{dst}, s{dst}, s{sT3}")
        e(f"s_add_u32 s{sT3}, s{sRT}, {rt_add}")
        e(f"s_mul_i32 s{sT3}, s{sT3}, {ks_per_tile*1024}")
        e(f"s_add_u32 s{dst}, s{dst}, s{sT3}")
        e(f"s_add_u32 s{dst}, s{dst}, {base_off}")
    sCF = k.s()
    e(f"s_mul_i32 s{sCF}, s{sC}, {NF}")
    if cfg.epi == "w2":
        res = [k.v(2) for _ in range(NF)]
        k.srd(srdX, pX, S*D*2)
        e(f"s_lshl_b32 s{sT}, s{sRT}, 4")
        e(f"v_add_u32 v{vt[0]}, s{sT}, v{vM}")
        e(f"v_mul_u32_u24 v{vt[0]}, 1280, v{vt[0]}")
        e(f"v_lshl_add_u32 v{vt[0]}, v{vG}, 3, v{vt[0]}")
        e(f"s_mul_i32 s{sT}, s{sC}, 160")
        for f in range(NF):
            e(f"buffer_load_dwordx2 v[{res[f]}:{res[f]+1}], v{vt[0]}, s[{srdX}:{srdX+3}], s{sT} offen offset:{f*32}")
    elif cfg.epi in ("w4", "wo"):
        res = [k.v(2) for _ in range(NF)]
        for f in range(NF):
            dfrag_soff(sT, X1_OFF if cfg.epi == "w4" else Y_OFF, f, 20, sCF)
            e(f"buffer_load_dwordx2 v[{res[f]}:{res[f]+1}], v{vD}, s[{srdWS}:{srdWS+3}], s{sT} offen")
        if cfg.epi == "wo":
            vGate = k.v()
            e(f"s_lshl_b32 s{sT}, s{sRT}, 6")
            e(f"s_add_u32 s{sT}, s{sT}, {G_OFF}")
            e(f"v_lshlrev_b32 v{vt[0]}, 2, v{vM}")
            e(f"buffer_load_dword v{vGate}, v{vt[0]}, s[{srdWS}:{srdWS+3}], s{sT} offen")
    elif cfg.epi == "w3":
        stt = [k.v(4) for _ in range(RF)]
        for r in range(RF):
            e(f"s_add_u32 s{sT}, s{sRT}, {r}")
            e(f"s_lshl_b32 s{sT}, s{sT}, 10")
            e(f"s_add_u32 s{sT}, s{sT}, {ST_OFF}")
            e(f"v_lshlrev_b32 v{vt[0]}, 6, v{vM}")
            e(f"v_lshl_add_u32 v{vt[0]}, v{vG}, 4, v{vt[0]}")
            e(f"buffer_load_dwordx4 v[{stt[r]}:{stt[r]+3}], v{vt[0]}, s[{srdWS}:{srdWS+3}], s{sT} offen")
    def act_load(ks_static, slot, dyn=False):
        o = []
        if cfg.shift:
            raise AssertionError
        return o
    sAo = k.s()
    def aload(slot, grp):
        o = []
        for r in range(RF):
            o.append(f"buffer_load_dwordx4 v[{af[slot][r]}:{af[slot][r]+3}], v{vA[grp][r]}, s[{srdA}:{srdA+3}], s{sAo} offen")
        return o
    full_unroll = cfg.shift
    for ks in range(4):
        e(f"s_mov_b32 s{sAo}, {ks*1024}")
        for x in aload(ks, (ks // 5) if cfg.shift else 0): e(x)
    for r in range(RF):
        for f in range(NF):
            for i in range(4): e(f"v_mov_b32 v{acc[r][f]+i}, 0")
    def wreads(buf, s):
        o = []
        for f in range(NF):
            off = s*32*cfg.rowb + f*32
            o.append(f"ds_read_b64_tr_b16 v[{wf[buf][f]}:{wf[buf][f]+1}], v{vWc} offset:{off}")
            o.append(f"ds_read_b64_tr_b16 v[{wf[buf][f]+2}:{wf[buf][f]+3}], v{vWc} offset:{off + 16*cfg.rowb}")
        return o
    def mfmas(buf, slot):
        o = []
        for f in range(NF):
            for r in range(RF):
                d = acc[r][f]
                o.append(f"v_mfma_f32_16x16x32_bf16 v[{d}:{d+3}], v[{wf[buf][f]}:{wf[buf][f]+3}], v[{af[slot][r]}:{af[slot][r]+3}], v[{d}:{d+3}]")
        return o
    def wadvance():
        return [f"s_add_u32 s{sSt}, s{sSt}, 1",
                f"s_add_u32 s{sSlot}, s{sSlot}, 1",
                f"s_cmp_eq_u32 s{sSlot}, {NSL}",
                f"s_cselect_b32 s{sDelta}, {(-(NSL-1)*cfg.stage) & 0xffffffff}, s{sRd}",
                f"s_cselect_b32 s{sSlot}, 0, s{sSlot}",
                f"v_add_u32 v{vWc}, s{sDelta}, v{vWc}"]
    e("s_barrier")
    k.stamp_at(1)
    e(f"s_mov_b32 s{sSt}, 0"); e(f"s_mov_b32 s{sSlot}, 0"); e(f"s_mov_b32 s{sRd}, {cfg.stage}")
    for x in wreads(0, 0): e(x)
    KS = cfg.KS
    def stage_code(j_static, half):
        s0, s1 = 2*half, 2*half + 1
        last = (j_static is not None and j_static == NST - 1)
        e(f"s_waitcnt vmcnt({3*RF}) lgkmcnt(0)")
        for x in interleave(mfmas(0, s0), wreads(1, 1), lead=2): e(x)
        e(f"s_waitcnt vmcnt({2*RF}) lgkmcnt(0)")
        def ld(slot, ksoff):
            if j_static is not None:
                ks = 2*(j_static + 2) + ksoff
                if ks < KS:
                    e(f"s_mov_b32 s{sAo}, {ks*1024}")
                    grp = (ks // 5) if cfg.shift else 0
                else:
                    e(f"s_mov_b32 s{sAo}, 0x40000000")
                    grp = 0
                return aload(slot, grp)
            else:
                pre = [f"s_add_u32 s{sT}, s{sKs}, {ksoff}",
                       f"s_lshl_b32 s{sAo}, s{sT}, 10",
                       f"s_cmp_lt_u32 s{sT}, {KS}",
                       f"s_cselect_b32 s{sAo}, s{sAo}, 0x40000000"]
                for x in pre: e(x)
                return aload(slot, 0)
        for x in ld(s0, 0): e(x)
        if last:
            for x in mfmas(1, s1): e(x)
            return
        adv = wadvance()
        for x in adv: e(x)
        e("s_barrier")
        for x in interleave(mfmas(1, s1), wreads(0, 0), lead=2): e(x)
        for x in ld(s1, 1): e(x)
        if j_static is None:
            e(f"s_add_u32 s{sKs}, s{sKs}, 2")
    if full_unroll:
        for j in range(NST): stage_code(j, j % 2)
    else:
        e(f"s_mov_b32 s{sKs}, 4")
        LOOP = k.newlab("gloop")
        k.lines.append(".p2align 6")
        k.lab(LOOP)
        stage_code(None, 0)
        stage_code(None, 1)
        e(f"s_cmp_lt_u32 s{sSt}, {NST-2}")
        e(f"s_cbranch_scc1 {LOOP}")
        stage_code(NST - 2, 0)
        stage_code(NST - 1, 1)
    k.stamp_at(2)
    if cfg.epi == "w3":
        e("s_barrier")
    e("s_nop 7")
    e("s_waitcnt vmcnt(0)")
    pk = [[wf[0][0] + 2*(r*NF + f) for f in range(NF)] for r in range(RF)]
    assert 2*RF*NF <= 8*NF
    def rnd_add(dst_pk, a, resp):
        t0, t1, t2, t3 = vt[0], vt[1], vt[2], vt[3]
        e(f"v_cvt_pk_bf16_f32 v{t0}, v{a}, v{a+1}")
        e(f"v_cvt_pk_bf16_f32 v{t1}, v{a+2}, v{a+3}")
        e(f"v_lshlrev_b32 v{a}, 16, v{t0}")
        e(f"v_and_b32 v{a+1}, 0xffff0000, v{t0}")
        e(f"v_lshlrev_b32 v{a+2}, 16, v{t1}")
        e(f"v_and_b32 v{a+3}, 0xffff0000, v{t1}")
        e(f"v_lshlrev_b32 v{t0}, 16, v{resp}")
        e(f"v_and_b32 v{t1}, 0xffff0000, v{resp}")
        e(f"v_lshlrev_b32 v{t2}, 16, v{resp+1}")
        e(f"v_and_b32 v{t3}, 0xffff0000, v{resp+1}")
        e(f"v_add_f32 v{a}, v{a}, v{t0}")
        e(f"v_add_f32 v{a+1}, v{a+1}, v{t1}")
        e(f"v_add_f32 v{a+2}, v{a+2}, v{t2}")
        e(f"v_add_f32 v{a+3}, v{a+3}, v{t3}")
    if cfg.epi in ("w2", "w4"):
        for f in range(NF):
            rnd_add(None, acc[0][f], res[f])
            e(f"v_cvt_pk_bf16_f32 v{pk[0][f]}, v{acc[0][f]}, v{acc[0][f]+1}")
            e(f"v_cvt_pk_bf16_f32 v{pk[0][f]+1}, v{acc[0][f]+2}, v{acc[0][f]+3}")
        for f in range(NF):
            dfrag_soff(sT, X1_OFF if cfg.epi == "w2" else Y_OFF, f, 20, sCF)
            e(f"buffer_store_dwordx2 v[{pk[0][f]}:{pk[0][f]+1}], v{vD}, s[{srdWS}:{srdWS+3}], s{sT} offen")
        if cfg.epi == "w2":
            s1r = vt[4]; s2r = vt[5]; on = vt[6]
            e(f"v_mov_b32 v{s1r}, 0"); e(f"v_mov_b32 v{s2r}, 0"); e(f"v_mov_b32 v{on}, 0x3f803f80")
            e("s_nop 0")
            for f in range(NF):
                for i in range(2):
                    e(f"v_dot2c_f32_bf16 v{s1r}, v{pk[0][f]+i}, v{on}")
                    e(f"v_dot2c_f32_bf16 v{s2r}, v{pk[0][f]+i}, v{pk[0][f]+i}")
            e("s_nop 3")
            reduce_g(k, s1r, vt[0], vt[1])
            reduce_g(k, s2r, vt[0], vt[1])
            e(f"v_mov_b32 v{vt[2]}, v{s1r}")
            e(f"v_mov_b32 v{vt[3]}, v{s2r}")
            e(f"s_lshl_b32 s{sT}, s{sRT}, 10")
            e(f"s_lshl_b32 s{sT2}, s{sC}, 3")
            e(f"s_add_u32 s{sT}, s{sT}, s{sT2}")
            e(f"s_add_u32 s{sT}, s{sT}, {ST_OFF}")
            e(f"v_lshlrev_b32 v{vt[0]}, 6, v{vM}")
            assert vt[2] % 2 == 0, vt
            e(f"s_mov_b64 exec, 0xffff")
            e(f"buffer_store_dwordx2 v[{vt[2]}:{vt[3]}], v{vt[0]}, s[{srdWS}:{srdWS+3}], s{sT} offen")
            e(f"s_mov_b64 exec, -1")
    elif cfg.epi == "wo":
        k.srd(srdX, pOut, S*D*2)
        v1g = vt[7]
        e(f"v_sub_f32 v{v1g}, 1.0, v{vGate}")
        e(f"v_cvt_pk_bf16_f32 v{v1g}, v{v1g}, v{v1g}")
        e(f"v_lshlrev_b32 v{v1g}, 16, v{v1g}")
        def rnd4(a):
            e(f"v_cvt_pk_bf16_f32 v{vt[0]}, v{a}, v{a+1}")
            e(f"v_cvt_pk_bf16_f32 v{vt[1]}, v{a+2}, v{a+3}")
            e(f"v_lshlrev_b32 v{a}, 16, v{vt[0]}")
            e(f"v_and_b32 v{a+1}, 0xffff0000, v{vt[0]}")
            e(f"v_lshlrev_b32 v{a+2}, 16, v{vt[1]}")
            e(f"v_and_b32 v{a+3}, 0xffff0000, v{vt[1]}")
        yq = wf[1][0]
        for f in range(NF):
            a = acc[0][f]
            rnd4(a)
            for i in range(4): e(f"v_mul_f32 v{a+i}, v{vGate}, v{a+i}")
            rnd4(a)
            e(f"v_lshlrev_b32 v{yq}, 16, v{res[f]}")
            e(f"v_and_b32 v{yq+1}, 0xffff0000, v{res[f]}")
            e(f"v_lshlrev_b32 v{yq+2}, 16, v{res[f]+1}")
            e(f"v_and_b32 v{yq+3}, 0xffff0000, v{res[f]+1}")
            for i in range(4): e(f"v_mul_f32 v{yq+i}, v{v1g}, v{yq+i}")
            rnd4(yq)
            for i in range(4): e(f"v_add_f32 v{a+i}, v{a+i}, v{yq+i}")
            e(f"v_cvt_pk_bf16_f32 v{pk[0][f]}, v{a}, v{a+1}")
            e(f"v_cvt_pk_bf16_f32 v{pk[0][f]+1}, v{a+2}, v{a+3}")
        e(f"s_lshl_b32 s{sT}, s{sRT}, 4")
        e(f"v_add_u32 v{vt[0]}, s{sT}, v{vM}")
        e(f"v_mul_u32_u24 v{vt[0]}, 1280, v{vt[0]}")
        e(f"v_lshl_add_u32 v{vt[0]}, v{vG}, 3, v{vt[0]}")
        e(f"s_mul_i32 s{sT}, s{sC}, 160")
        for f in range(NF):
            e(f"buffer_store_dwordx2 v[{pk[0][f]}:{pk[0][f]+1}], v{vt[0]}, s[{srdX}:{srdX+3}], s{sT} offen offset:{f*32}")
    elif cfg.epi == "w3":
        csv = [wf[1][0] + 4*f for f in range(NF)]
        e(f"v_lshlrev_b32 v{vt[0]}, 4, v{vG}")
        e(f"v_add_u32 v{vt[0]}, {CSOFF}, v{vt[0]}")
        for f in range(NF):
            e(f"ds_read_b128 v[{csv[f]}:{csv[f]+3}], v{vt[0]} offset:{f*64}")
        cA = k.v(); cB = k.v(); vMean = [k.v() for _ in range(RF)]; vRstd = [k.v() for _ in range(RF)]
        e(f"v_mov_b32 v{cA}, {hexf(GELU_A)}")
        e(f"v_mov_b32 v{cB}, {hexf(GELU_B)}")
        for r in range(RF):
            e(f"v_add_f32 v{stt[r]}, v{stt[r]}, v{stt[r]+2}")
            e(f"v_add_f32 v{stt[r]+1}, v{stt[r]+1}, v{stt[r]+3}")
            reduce_g(k, stt[r], vt[1], vt[2])
            reduce_g(k, stt[r]+1, vt[1], vt[2])
            e(f"v_mul_f32 v{vMean[r]}, {hexf(1.0/640)}, v{stt[r]}")
            e(f"v_mul_f32 v{vt[1]}, {hexf(1.0/640)}, v{stt[r]+1}")
            e(f"v_fma_f32 v{vt[1]}, -v{vMean[r]}, v{vMean[r]}, v{vt[1]}")
            e(f"v_max_f32 v{vt[1]}, 0, v{vt[1]}")
            e(f"v_add_f32 v{vt[1]}, {hexf(1e-5)}, v{vt[1]}")
            e(f"v_rsq_f32 v{vRstd[r]}, v{vt[1]}")
        e("s_waitcnt lgkmcnt(0)")
        tmp = [af[0][0] + i for i in range(4*RF*4)]
        for r in range(RF):
            for f0 in range(0, NF, 4):
                fs = list(range(f0, min(NF, f0 + 4)))
                vals = [acc[r][f] + i for f in fs for i in range(4)]
                for f in fs:
                    for i in range(4):
                        e(f"v_fma_f32 v{acc[r][f]+i}, -v{vMean[r]}, v{csv[f]+i}, v{acc[r][f]+i}")
                for v_ in vals: e(f"v_mul_f32 v{v_}, v{vRstd[r]}, v{v_}")
                gelu_vals(k, vals, tmp[:len(vals)], cA, cB)
        for r in range(RF):
            for f in range(NF):
                e(f"v_cvt_pk_bf16_f32 v{pk[r][f]}, v{acc[r][f]}, v{acc[r][f]+1}")
                e(f"v_cvt_pk_bf16_f32 v{pk[r][f]+1}, v{acc[r][f]+2}, v{acc[r][f]+3}")
        for f in range(NF):
            Lsk = k.newlab("sk")
            e(f"s_add_u32 s{sT2}, s{sCF}, {f}")
            e(f"s_cmp_ge_u32 s{sT2}, 108")
            e(f"s_cbranch_scc1 {Lsk}")
            for r in range(RF):
                dfrag_soff(sT, H3_OFF, f, 54, sCF, rt_add=r)
                e(f"buffer_store_dwordx2 v[{pk[r][f]}:{pk[r][f]+1}], v{vD}, s[{srdWS}:{srdWS+3}], s{sT} offen")
            k.lab(Lsk)
    k.lab(END)
    if k.prof:
        k.stamp_at(5)
        e("s_waitcnt vmcnt(0)")
        k.stamp_at(6)
        k.stamp_flush(pWS, vt[0], sT, sW, 6)

def gen_kg(cfg):
    k = Kern(f"g{cfg.name}_kernel")
    k.e("s_cmp_ge_u32 s2, 256")
    k.e(f"s_cbranch_scc1 {k.name}_x")
    gen_gemm_body(k, cfg, k.name + "_end")
    k.lab(k.name + "_x")
    k.e("s_endpgm")
    return k
```

```python
S = 2048; D = 640; H = 32; DH = 20; F = 1728
Q_OFF = 0
Q_SIZE = 32*64*1280
KV_OFF = Q_OFF + Q_SIZE
KV_CHUNK = 22528
KV_SIZE = 8*KV_CHUNK
KMAX_OFF = KV_OFF + KV_SIZE
KMAX_SIZE = 1024
G_OFF = KMAX_OFF + KMAX_SIZE
G_SIZE = 8192
H_OFF = G_OFF + G_SIZE
ACT_SIZE = 128*40*512
X1_OFF = H_OFF + ACT_SIZE
ST_OFF = X1_OFF + ACT_SIZE
ST_SIZE = 2048*8*2*4
H3_OFF = ST_OFF + ST_SIZE
H3_SIZE = 128*108*512
Y_OFF = H3_OFF + H3_SIZE
O_OFF = Y_OFF + ACT_SIZE
WS_USED = O_OFF + ACT_SIZE
for n in ("KV_OFF","KMAX_OFF","G_OFF","H_OFF","X1_OFF","ST_OFF","H3_OFF","Y_OFF","O_OFF"):
    assert globals()[n] % 256 == 0, n
import math
QSCALE = (DH ** -0.5) * math.log2(math.e)
```

```python
import sys
from asmlib import *
from layout import *
import k1, ka, kg
HDR = open("gated_mix__grouped_kv_mqa__mixer_s_mlp__prompt.s.ref").read().split("; Override launch")[0]
def build(kernels, launches):
    out = [HDR.rstrip("\n")]
    for (name, grid, block, lds) in launches:
        out.append(f"; @launch kernel={name} grid=({grid},1,1) block=({block},1,1) lds={lds}")
    out.append('.amdgcn_target "amdgcn-amd-amdhsa--gfx950"')
    out.append(".text")
    for kk in kernels:
        out.append(kk.text())
    return "\n".join(out) + "\n"
import asmlib
if __name__ == "__main__":
    if "--prof" in sys.argv: asmlib.PROFILE = True
    K1 = k1.gen_k1()
    KAk = ka.gen_ka()
    G = {c.name: kg.gen_kg(c) for c in (kg.CFG_W2, kg.CFG_W3, kg.CFG_W4, kg.CFG_WO)}
    launches = [("k1_kernel", 256, k1.K1_THREADS, k1.K1_LDS), ("ka_kernel", 256, ka.KA_THREADS, ka.KA_LDS)]
    launches += [(f"g{n}_kernel", 256, kg.KG_THREADS, kg.KG_LDS) for n in ("w2", "w3", "w4", "wo")]
    txt = build([K1, KAk] + list(G.values()), launches)
    open([a for a in sys.argv[1:] if not a.startswith("--")][0], "w").write(txt)
```
